```python
import torch

def _softmax(x, axis=-1):
    return torch.softmax(x, dim=axis)
def _gelu(x):
    return torch.nn.functional.gelu(x, approximate="tanh")
def _silu(x):
    return torch.nn.functional.silu(x)
def _sigmoid(x):
    return torch.sigmoid(x)
def _layernorm(x, axis=-1, eps=1e-5):
    m = x.mean(dim=axis, keepdim=True)
    v = x.var(dim=axis, keepdim=True, unbiased=False)
    return (x - m) / torch.sqrt(v + eps)
def _scatter_add(tgt, idx, src, axis=0):
    return tgt.clone().index_add_(axis, idx, src)
def _segment_sum(src, seg, n):
    out = torch.zeros((n,) + src.shape[1:], dtype=src.dtype)
    return out.index_add_(0, seg, src)
def _pad(x, pw):
    flat = tuple(v for pair in reversed(pw) for v in pair)
    return torch.nn.functional.pad(x, flat)

kernel_name = 'standalone__gqa_softmax__near_ridge'

def setup_inputs():

    _w = (lambda a: (lambda t: t.to(torch.bfloat16) if t.is_floating_point() else t)(torch.as_tensor(a)))
    B, Hq, Hkv, Sq, Sk, D = 8, 32, 32, 288, 512, 128
    return {
        "q": _w((lambda *s: torch.randn(*s, dtype=torch.bfloat16) * 0.8)(B, Hq, Sq, D)),
        "k": _w((lambda *s: torch.randn(*s, dtype=torch.bfloat16) * 0.8)(B, Hkv, Sk, D)),
        "v": _w((lambda *s: torch.randn(*s, dtype=torch.bfloat16) * 0.05)(B, Hkv, Sk, D)),
    }

def reference(q, k, v):
    B, Hq, Sq, D = q.shape
    Hkv = k.shape[1]
    rep = Hq // Hkv
    k = (lambda x, n, axis: torch.repeat_interleave(x, n, dim=axis))(k, rep, axis=1)
    v = (lambda x, n, axis: torch.repeat_interleave(x, n, dim=axis))(v, rep, axis=1)
    scale = D ** -0.5
    scores = torch.einsum("bhqd,bhkd->bhqk", q, k) * scale
    p = _softmax(scores, axis=-1)
    return torch.einsum("bhqk,bhkd->bhqd", p, v)
```

```python
import re

def regs_of(tok):
    tok = tok.strip()
    neg = tok.lstrip('-')
    m = re.fullmatch(r'(?:abs\()?([vas])(\d+)\)?', neg)
    if m: return [(m.group(1), int(m.group(2)))]
    m = re.fullmatch(r'([vas])\[(\d+):(\d+)\]', neg)
    if m: return [(m.group(1), i) for i in range(int(m.group(2)), int(m.group(3)) + 1)]
    if neg == 'vcc': return [('s', 106), ('s', 107)]
    if neg == 'm0': return [('m', 0)]
    if neg == 'exec': return [('e', 0)]
    return []

TRANS = ('v_exp_f32', 'v_log_f32', 'v_rcp_f32', 'v_rsq_f32', 'v_sqrt_f32', 'v_sin_f32', 'v_cos_f32')

class Ins:
    def __init__(self, text):
        self.text = text
        t = text.split(';')[0].strip()
        self.label = t.endswith(':')
        parts = t.split(None, 1)
        self.op = parts[0] if parts else ''
        ops = []
        if len(parts) > 1:
            ops = [o.strip() for o in re.split(r',(?![^\[]*\])', parts[1])]
            if ops:
                last = ops[-1].split()
                ops[-1] = last[0] if last else ''
                self.mods = last[1:]
        self.ops = ops
        op = self.op
        self.is_mfma = op.startswith('v_mfma')
        self.is_valu = op.startswith('v_') and not self.is_mfma
        self.is_trans = any(op.startswith(x) for x in TRANS)
        self.is_ds = op.startswith('ds_')
        self.is_vmem = op.startswith('buffer_') or op.startswith('global_')
        self.is_salu = op.startswith('s_')
        self.w = []; self.r = []
        R = [regs_of(o) for o in ops]
        if self.is_mfma:
            self.w = R[0]; self.A = R[1]; self.B = R[2]; self.C = R[3]; self.r = R[1] + R[2] + R[3]
        elif op.startswith('v_cmp'):
            self.w = R[0]; self.r = sum(R[1:], [])
        elif op.startswith('v_readfirstlane') or op.startswith('v_readlane'):
            self.w = R[0]; self.r = sum(R[1:], [])
        elif op.startswith('v_permlane32_swap') or op.startswith('v_permlane16_swap'):
            self.w = R[0] + R[1]; self.r = R[0] + R[1]
        elif op.startswith('v_fmac') or op.startswith('v_dot2c'):
            self.w = R[0]; self.r = sum(R, [])
        elif self.is_valu:
            self.w = R[0]; self.r = sum(R[1:], [])
            if op.startswith('v_cndmask') and len(ops) == 3: self.r += regs_of('vcc')
        elif self.is_ds:
            if 'read' in op: self.w = R[0]; self.r = sum(R[1:], [])
            else: self.r = sum(R, [])
        elif self.is_vmem:
            if 'lds' in t.split(): self.r = sum(R, []) + [('m', 0)]
            elif 'load' in op: self.w = R[0]; self.r = sum(R[1:], [])
            else: self.r = sum(R, [])
        elif self.is_salu:
            if op.startswith('s_cmp') or op.startswith('s_bitcmp') or op.startswith('s_cbranch') or op in ('s_branch', 's_barrier', 's_waitcnt', 's_nop', 's_endpgm', 's_setprio', 's_sleep'):
                self.r = sum(R, [])
            else:
                self.w = R[0] if R else []; self.r = sum(R[1:], [])
    def states(self):
        if self.op == 's_nop': return int(self.ops[0], 0) + 1
        return 1

def check(lines, name=''):
    ins = [Ins(l) for l in lines if l.strip() and not l.strip().startswith(';') and not l.strip().startswith('.')]
    ins = [i for i in ins if not i.label and i.op]
    errs = []
    n = len(ins)
    for i, c in enumerate(ins):
        dist = 0
        j = i - 1
        while j >= 0 and dist < 24:
            p = ins[j]
            need = 0; why = ''
            pw = set(p.w); cr = set(c.r); cw = set(c.w)
            vw = {x for x in pw if x[0] in 'va'}
            sw = {x for x in pw if x[0] == 's'}
            if p.is_mfma:
                passes = 8 if '32x32x16' in p.op else 4
                rw = {8: 12, 4: 8}[passes]
                if c.is_mfma:
                    if vw & set(c.A + c.B): need, why = rw, 'mfma D -> mfma A/B'
                    elif vw & set(c.C):
                        if set(c.C) == vw and c.op == p.op: need = 0
                        else: need, why = {8: 10, 4: 6}[passes], 'mfma D -> mfma C overlap'
                elif (c.is_valu or c.is_ds or c.is_vmem) and (vw & (cr | cw)): need, why = rw, 'mfma D -> valu/mem rw'
                if c.is_valu and (set(p.C) & cw) and not (vw & cw):
                    need2 = {8: 7, 4: 3}[passes]
                    if need2 > need: need, why = need2, 'mfma C read -> valu write WAR'
            elif p.is_valu:
                if c.is_mfma and (vw & cr): need, why = 2, 'valu -> mfma operand'
                if p.is_trans and c.is_valu and not c.is_trans and (vw & cr): need, why = max(need, 1), 'trans -> valu'
                if c.op.startswith('v_permlane') and (vw & cr): need, why = max(need, 2), 'valu -> permlane'
                if (c.op.startswith('v_readfirstlane') or c.op.startswith('v_readlane')) and (vw & cr): need, why = max(need, 1), 'valu->readlane'
                if sw & cr:
                    if c.is_valu: need, why = max(need, 2), 'valu sgpr -> valu read'
                    elif c.is_vmem: need, why = max(need, 5), 'valu sgpr -> vmem'
                    elif c.is_salu: need, why = max(need, 4), 'valu sgpr -> salu (pad)'
            elif p.is_salu:
                if ('m', 0) in pw and c.is_vmem and ('m', 0) in cr: need, why = 1, 'm0 -> dma'
            if p.is_vmem and 'store' in p.op and 'x4' in p.op:
                data = set(regs_of(p.ops[0]))
                if cw & data:
                    need, why = max(need, 2 if c.is_valu else 1), 'store data WAR'
            if need > dist:
                errs.append(f'{name}: need {need} have {dist} [{why}]: "{p.text.strip()}" -> "{c.text.strip()}"')
            dist += p.states()
            j -= 1
    return errs
```

```python
import sys, math, struct
from hazard import check

NAME = 'standalone__gqa_softmax__near_ridge_kernel'

def f2u(x): return struct.unpack('<I', struct.pack('<f', x))[0]

OA, OB = 0, 64
SA, SB, SC = 128, 144, 160
NA, NB, NC = 176, 192, 208
lA, lB, lC = 224, 225, 226
vKr0, vKr1, vVr = 227, 228, 229
vDKa, vDKb, vDV = 230, 231, 232
mA, mB, mC = 233, 234, 235
vKr0b, vVrb = 236, 237
vLane = 238
T = 240
aOC, aQA, aQB, aQC, aKF, aVF = 0, 64, 96, 128, 160, 192

S = {'A': SA, 'B': SB, 'C': SC}
NEG = {'A': NA, 'B': NB, 'C': NC}
LL = {'A': lA, 'B': lB, 'C': lC}
MM = {'A': mA, 'B': mB, 'C': mC}
QQ = {'A': aQA, 'B': aQB, 'C': aQC}

sQ, sK, sV, sO = 12, 16, 20, 24
sW, sW2k, sJ, sLag, sExtra = 28, 29, 30, 31, 32
sC = 34
sSoff, sM0, sdV, sdK = 36, 37, 38, 39
sPass, sT1, sThr, sPair, sMask, sT2, sT3 = 40, 41, 42, 43, 44, 45, 46
sMJ = 47
sP16k, sWrap = 48, 49

def vr(b, n): return f'v[{b}:{b+n-1}]'
def ar(b, n): return f'a[{b}:{b+n-1}]'
def sr(b, n): return f's[{b}:{b+n-1}]'

class Gen:
    def __init__(self, opt):
        self.L = []
        self.opt = opt
    def __call__(self, s): self.L.append('  ' + s)
    def label(self, s): self.L.append(s + ':')
    def c(self, s): self.L.append('  ; ' + s)

    def dma(self, vo, srd, soff, off=0, flag=None):
        fl = self.opt.get('ldflag', '') if flag is None else flag
        o = f' offset:{off}' if off else ''
        fl = f' {fl}' if fl else ''
        return f'buffer_load_dwordx4 v{vo}, {sr(srd,4)}, {soff} offen{o}{fl} lds'

    def issue_kv_tile(self, n):
        j, isv = n >> 1, n & 1
        slot = n % 20
        self(f's_add_u32 m0, s{sW2k}, {slot * 8192}')
        self(f's_mov_b32 s{sT1}, {j * 8192}')
        if isv:
            self(self.dma(vDV, sV, f's{sT1}'))
            self(self.dma(vDV, sV, f's{sT1}', 1024))
        else:
            self(self.dma(vDKa, sK, f's{sT1}'))
            self(self.dma(vDKb, sK, f's{sT1}', 1024))

    def mfma_qk(self, X, t, first_c):
        c = first_c if t == 0 else vr(S[X], 16)
        return f'v_mfma_f32_32x32x16_bf16 {vr(S[X],16)}, {ar(aKF+4*t,4)}, {ar(QQ[X]+4*t,4)}, {c}'

    def mfma_pv(self, X, k):
        s, dt = k >> 2, k & 3
        if X == 'C': o = ar(aOC + 16 * dt, 16)
        else: o = vr((OA if X == 'A' else OB) + 16 * dt, 16)
        return f'v_mfma_f32_32x32x16_bf16 {o}, {ar(aVF+4*k,4)}, {vr(S[X]+4*s,4)}, {o}'

    def exp(self, X, r): return f'v_exp_f32 v{S[X]+r}, v{S[X]+r}'
    def add(self, X, r): return f'v_add_f32 v{LL[X]}, v{LL[X]}, v{S[X]+r}'
    def cvt(self, X, k): return f'v_cvt_pk_bf16_f32 v{S[X]+k}, v{S[X]+2*k}, v{S[X]+2*k+1}'
    def kread(self, t):
        return f'ds_read_b128 {ar(aKF+4*t,4)}, v{vKr0 if t % 2 == 0 else vKr1} offset:{(t>>1)*256}'
    def vread(self, k, e):
        s, dt = k >> 2, k & 3
        return f'ds_read_b64_tr_b16 {ar(aVF+4*k+2*e,2)}, v{vVr} offset:{(4*s+2*e)*1024+dt*256}'

    def block(self, cur, nxt, vreads=False, kreads=False, dma=False, kadv=False, pre_wait_k=False):
        gaps = [[] for _ in range(16)]
        pre = [[] for _ in range(16)]
        for g in range(10): gaps[g].append(self.exp(cur, g + 6))
        gaps[0].append(self.add(cur, 5))
        for g in range(1, 11): gaps[g].append(self.add(cur, g + 5))
        for g in range(11, 16): gaps[g].append(self.add(nxt, g - 11))
        gaps[0].append(self.cvt(cur, 2)); gaps[2].append(self.cvt(cur, 3)); gaps[4].append(self.cvt(cur, 4))
        gaps[6].append(self.cvt(cur, 5)); gaps[8].append(self.cvt(cur, 6)); gaps[10].append(self.cvt(cur, 7))
        gaps[12].append(self.cvt(nxt, 0)); gaps[14].append(self.cvt(nxt, 1))
        for g in range(10, 16): gaps[g].append(self.exp(nxt, g - 10))
        if vreads:
            for k in range(8):
                gaps[k].append(self.vread(k, 0)); gaps[k].append(self.vread(k, 1))
            pre[8].append('s_waitcnt lgkmcnt(8)')
            pre[12].append(f's_waitcnt lgkmcnt({4 if kreads else 0})')
        if kreads:
            for t in range(8): gaps[8 + t].append(self.kread(t))
        if pre_wait_k:
            pre[0].append('s_waitcnt lgkmcnt(4)')
            pre[4].append('s_waitcnt lgkmcnt(0)')
        if vreads:
            gaps[9].append(f'v_add_u32 v{vVr}, s{sdV}, v{vVr}')
        if dma:
            gaps[8].insert(0, f's_mov_b32 m0, s{sM0}')
            gaps[9].append(self.dma(vDKa, sK, f's{sSoff}'))
            gaps[11].append(self.dma(vDKb, sK, f's{sSoff}', 1024))
            gaps[12].insert(0, f's_add_u32 m0, s{sM0}, 8192')
            gaps[13].append(self.dma(vDV, sV, f's{sSoff}'))
            gaps[15].append(self.dma(vDV, sV, f's{sSoff}', 1024))
        if kadv:
            gaps[1].append(f'v_add_u32 v{vKr0}, s{sdK}, v{vKr0}')
            gaps[3].append(f'v_add_u32 v{vKr1}, s{sdK}, v{vKr1}')
        out = []
        for g in range(16):
            out += pre[g]
            out.append(self.mfma_qk(nxt, g, vr(NEG[nxt], 16)) if g < 8 else self.mfma_pv(cur, g - 8))
            out += gaps[g]
        for s in out: self(s)

    def step_scalars(self):
        self(f's_add_u32 s{sSoff}, s{sSoff}, 8192')
        self(f's_add_u32 s{sPair}, s{sPair}, 16384')
        self(f's_cmp_eq_u32 s{sPair}, 163840')
        self(f's_cselect_b32 s{sPair}, 0, s{sPair}')
        self(f's_add_u32 s{sM0}, s{sPair}, s{sW2k}')
        self(f's_cmp_ge_u32 s{sSoff}, 131072')
        self(f's_cselect_b32 s{sM0}, 0x30000, s{sM0}')
        self(f's_cmp_eq_u32 s{sJ}, 8')
        self(f's_cselect_b32 s{sdK}, s{sWrap}, s{sP16k}')

    def stub(self):
        self('s_waitcnt vmcnt(30)')
        self('s_barrier')

    def drain(self, cur):
        e, a, c = self.exp, self.add, self.cvt
        X = cur
        seq = [a(X,5), c(X,2), e(X,6), e(X,7), e(X,8), a(X,6), a(X,7), c(X,3), e(X,9), a(X,8),
               self.mfma_pv(X,0), e(X,10), e(X,11), a(X,9), c(X,4),
               self.mfma_pv(X,1), e(X,12), e(X,13), a(X,10), a(X,11), c(X,5),
               self.mfma_pv(X,2), e(X,14), e(X,15), a(X,12), a(X,13), c(X,6),
               self.mfma_pv(X,3), a(X,14), a(X,15), c(X,7), 's_nop 1',
               self.mfma_pv(X,4), self.mfma_pv(X,5), self.mfma_pv(X,6), self.mfma_pv(X,7)]
        for s in seq: self(s)

    def qprep(self, dstA, base_expr):
        self(f'v_add_u32 v{T}, {base_expr}, v{vKr0b}')
        self(f'v_xor_b32 v{T+1}, 32, v{T}')
        for t in range(8):
            self(f'ds_read_b128 {vr(4*t,4)}, v{T + (t & 1)} offset:{(t>>1)*256}')
        for r in range(32):
            if r % 4 == 0: self(f's_waitcnt lgkmcnt({7 - r // 4})')
            lo = 32 + 2 * (r % 8)
            self(f'v_lshlrev_b32 v{lo}, 16, v{r}')
            self(f'v_and_b32 v{lo+1}, s{sMask}, v{r}')
            self(f'v_pk_mul_f32 {vr(lo,2)}, {vr(lo,2)}, {sr(sC,2)}')
            self(f'v_cvt_pk_bf16_f32 v{r}, v{lo}, v{lo+1}')
            self(f'v_accvgpr_write_b32 a{dstA+r}, v{r}')

    def maxtree(self, X):
        out = []
        for i in range(8):
            out.append(f'v_max3_f32 v{MM[X]}, v{MM[X]}, v{S[X]+2*i}, v{S[X]+2*i+1}')
        return out

    def build(self):
        o = self.opt
        a = self
        a('s_cmp_ge_u32 s2, 256')
        a('s_cbranch_scc1 L_end')
        a('s_load_dwordx4 s[4:7], s[0:1], 0')
        a('s_load_dwordx4 s[8:11], s[0:1], 16')
        a(f'v_and_b32 v{vLane}, 63, v0')
        a(f'v_lshrrev_b32 v{T}, 6, v0')
        a(f's_mov_b32 s{sMask}, 0xffff0000')
        a(f'v_readfirstlane_b32 s{sW}, v{T}')
        a(f'v_bfe_u32 v{T+1}, v{vLane}, 2, 2')
        a(f'v_lshlrev_b32 v{T+1}, 8, v{T+1}')
        a(f'v_lshrrev_b32 v{T+2}, 4, v{vLane}')
        a(f'v_lshl_add_u32 v{T+1}, v{T+2}, 6, v{T+1}')
        a(f'v_and_b32 v{T+2}, 3, v{vLane}')
        for x in range(4):
            a(f'v_xor_b32 v{T+3}, {x}, v{T+2}')
            a(f'v_lshl_add_u32 v{T+4+x}, v{T+3}, 4, v{T+1}')
        a(f's_lshl_b32 s{sW2k}, s{sW}, 11')
        a(f's_lshl_b32 s{sT1}, s{sW}, 1')
        a(f's_and_b32 s{sT1}, s{sT1}, 3')
        a(f's_or_b32 s{sT2}, s{sT1}, 1')
        a(f'v_add_u32 v{vDV}, s{sW2k}, v{T+4}')
        a(f'v_xor_b32 v{T+3}, s{sT1}, v{T+2}')
        a(f'v_lshl_add_u32 v{vDKa}, v{T+3}, 4, v{T+1}')
        a(f'v_add_u32 v{vDKa}, s{sW2k}, v{vDKa}')
        a(f'v_xor_b32 v{T+3}, s{sT2}, v{T+2}')
        a(f'v_lshl_add_u32 v{vDKb}, v{T+3}, 4, v{T+1}')
        a(f'v_add_u32 v{vDKb}, s{sW2k}, v{vDKb}')
        a('s_waitcnt lgkmcnt(0)')
        a(f's_mul_i32 s{sT3}, s2, 73728')
        a(f's_add_u32 s{sQ}, s4, s{sT3}'); a(f's_addc_u32 s{sQ+1}, s5, 0'); a(f's_mov_b32 s{sQ+2}, 73728'); a(f's_mov_b32 s{sQ+3}, 0x20000')
        a(f's_add_u32 s{sO}, s10, s{sT3}'); a(f's_addc_u32 s{sO+1}, s11, 0'); a(f's_mov_b32 s{sO+2}, 73728'); a(f's_mov_b32 s{sO+3}, 0x20000')
        a(f's_lshl_b32 s{sT3}, s2, 17')
        a(f's_add_u32 s{sK}, s6, s{sT3}'); a(f's_addc_u32 s{sK+1}, s7, 0'); a(f's_mov_b32 s{sK+2}, 131072'); a(f's_mov_b32 s{sK+3}, 0x20000')
        a(f's_add_u32 s{sV}, s8, s{sT3}'); a(f's_addc_u32 s{sV+1}, s9, 0'); a(f's_mov_b32 s{sV+2}, 131072'); a(f's_mov_b32 s{sV+3}, 0x20000')
        a.c('K0')
        self.issue_kv_tile(0)
        a.c('QC -> slot 11')
        a(f's_add_u32 m0, s{sW2k}, {11*8192}')
        a(f's_mov_b32 s{sT1}, {8*8192}')
        a(self.dma(vDKa, sQ, f's{sT1}')); a(self.dma(vDKb, sQ, f's{sT1}', 1024))
        a.c('QA -> slot 12+w, QB -> slot 16+w')
        a(f's_lshl_b32 s{sT2}, s{sW}, 13')
        a(f's_lshl_b32 s{sT3}, s{sW}, 14')
        for X, slot0, toff in (('A', 12, 0), ('B', 16, 8192)):
            for half in range(2):
                a(f's_add_u32 m0, s{sT2}, {slot0*8192 + half*4096}')
                a(f's_add_u32 s{sT1}, s{sT3}, {toff + half*4096}')
                for x in range(4):
                    a(self.dma(T + 4 + x, sQ, f's{sT1}', x * 1024))
        for n in range(1, 11): self.issue_kv_tile(n)
        a(f'v_and_b32 v{T}, 31, v{vLane}')
        a(f'v_lshrrev_b32 v{T+1}, 5, v{vLane}')
        a(f'v_lshrrev_b32 v{T+2}, 2, v{T}')
        a(f'v_lshlrev_b32 v{vKr0b}, 10, v{T+2}')
        a(f'v_and_b32 v{T+3}, 3, v{T}')
        a(f'v_lshl_add_u32 v{vKr0b}, v{T+3}, 6, v{vKr0b}')
        a(f'v_and_b32 v{T+2}, 3, v{T+2}')
        a(f'v_xor_b32 v{T+2}, v{T+1}, v{T+2}')
        a(f'v_lshl_add_u32 v{vKr0b}, v{T+2}, 4, v{vKr0b}')
        a(f'v_lshlrev_b32 v{vVrb}, 10, v{T+1}')
        a(f'v_bfe_u32 v{T+2}, v{vLane}, 2, 2')
        a(f'v_lshl_add_u32 v{vVrb}, v{T+2}, 6, v{vVrb}')
        a(f'v_bfe_u32 v{T+2}, v{vLane}, 4, 1')
        a(f'v_lshl_add_u32 v{vVrb}, v{T+2}, 5, v{vVrb}')
        a(f'v_and_b32 v{T+2}, 3, v{vLane}')
        a(f'v_lshl_add_u32 v{vVrb}, v{T+2}, 3, v{vVrb}')
        a(f'v_add_u32 v{vVrb}, 8192, v{vVrb}')
        cval = f2u(math.log2(math.e) / math.sqrt(128.0))
        a(f's_mov_b32 s{sC}, {cval:#x}'); a(f's_mov_b32 s{sC+1}, {cval:#x}')
        a(f's_mov_b32 s{sThr}, {f2u(2.0**32):#x}')
        a(f's_mov_b32 s{sPass}, 0')
        a(f's_mov_b32 s{sP16k}, 16384')
        a(f's_mov_b32 s{sWrap}, {(-147456) & 0xffffffff:#x}')
        a(f's_lshl_b32 s{sExtra}, 1, s{sW}')
        a(f's_mul_i32 s{sExtra}, s{sExtra}, 0x11111')
        a(f's_add_u32 s{sT1}, s{sW}, 1')
        a(f's_lshl_b32 s{sLag}, 15, s{sT1}')
        a(f's_and_b32 s{sLag}, s{sLag}, 15')
        a(f's_mul_i32 s{sLag}, s{sLag}, 0x11111')
        for X in 'ABC': a(f'v_mov_b32 v{MM[X]}, 0xff800000')
        a('s_waitcnt vmcnt(28)')
        a('s_barrier')
        a(f's_lshl_b32 s{sT2}, s{sW}, 13')
        a(f's_add_u32 s{sT1}, s{sT2}, {12*8192}')
        self.qprep(aQA, f's{sT1}')
        a(f's_mov_b32 s{sT1}, {11*8192}')
        self.qprep(aQC, f's{sT1}')
        a('s_waitcnt vmcnt(20)')
        a(f's_add_u32 s{sT1}, s{sT2}, {16*8192}')
        self.qprep(aQB, f's{sT1}')
        a(f's_mov_b32 s{sMJ}, 0')
        a.label('L_MAXBODY')
        a(f'v_mov_b32 v{vKr0}, v{vKr0b}')
        a(f'v_xor_b32 v{vKr1}, 32, v{vKr0b}')
        for t in range(8): a(self.kread(t))
        a('s_waitcnt lgkmcnt(0)')
        for t in range(8): a(self.mfma_qk('A', t, '0'))
        for t in range(8): a(self.mfma_qk('C', t, '0'))
        trA = self.maxtree('A')
        for t in range(8):
            a(self.mfma_qk('B', t, '0'))
            if t >= 4: a(trA[2*(t-4)]); a(trA[2*(t-4)+1])
        for s in self.maxtree('C'): a(s)
        a('s_nop 3')
        for s in self.maxtree('B'): a(s)
        a(f's_cmp_eq_u32 s{sPass}, 0')
        a('s_cbranch_scc1 L_MAXDONE')
        a(f's_add_u32 s{sMJ}, s{sMJ}, 1')
        a(f's_cmp_eq_u32 s{sMJ}, 16')
        a('s_cbranch_scc1 L_FB_RESTART')
        a.label('L_FB_LOAD')
        a('s_barrier')
        a(f's_mov_b32 m0, s{sW2k}')
        a(f's_lshl_b32 s{sT1}, s{sMJ}, 13')
        a(self.dma(vDKa, sK, f's{sT1}')); a(self.dma(vDKb, sK, f's{sT1}', 1024))
        a('s_waitcnt vmcnt(0)')
        a('s_barrier')
        a('s_branch L_MAXBODY')
        a.label('L_FB_RESTART')
        a('s_barrier')
        for n in range(0, 11): self.issue_kv_tile(n)
        a('s_waitcnt vmcnt(20)')
        a('s_barrier')
        for t in range(8): a(self.kread(t))
        a.label('L_MAXDONE')
        for i, X in enumerate('ABC'):
            a(f'v_mov_b32 v{T+i}, v{MM[X]}')
        a('s_nop 0')
        for i, X in enumerate('ABC'):
            a(f'v_permlane32_swap_b32 v{MM[X]}, v{T+i}')
        for i, X in enumerate('ABC'):
            a(f'v_max_f32 v{MM[X]}, v{MM[X]}, v{T+i}')
        for X in 'ABC':
            a(f'v_sub_f32 v{NEG[X]}, 0, v{MM[X]}')
            for r in range(1, 16): a(f'v_mov_b32 v{NEG[X]+r}, v{NEG[X]}')
        for r in range(128): a(f'v_mov_b32 v{r}, 0')
        for r in range(64): a(f'v_accvgpr_write_b32 a{aOC+r}, 0')
        for X in 'ABC': a(f'v_mov_b32 v{LL[X]}, 0')
        a('s_waitcnt vmcnt(16) lgkmcnt(0)')
        a('s_barrier')
        for n in range(11, 18): self.issue_kv_tile(n)
        for t in range(8): a(self.mfma_qk('A', t, vr(NA, 16)))
        a(f's_mov_b32 s{sJ}, 0')
        a(f's_mov_b32 s{sSoff}, {9*8192}')
        a(f's_mov_b32 s{sPair}, {9*16384}')
        a(f's_add_u32 s{sM0}, s{sPair}, s{sW2k}')
        a(f's_mov_b32 s{sdV}, 16384')
        a(f'v_add_u32 v{vKr0}, 16384, v{vKr0b}')
        a(f'v_xor_b32 v{vKr1}, 32, v{vKr0}')
        a(f'v_mov_b32 v{vVr}, v{vVrb}')
        a('s_nop 7')
        e, ad, cv = self.exp, self.add, self.cvt
        for s in [e('A',0), e('A',1), e('A',2), ad('A',0), ad('A',1), cv('A',0), e('A',3), e('A',4), ad('A',2), ad('A',3), cv('A',1), e('A',5), ad('A',4)]:
            a(s)
        a('s_branch L_NOSTUB1')
        a.label('L_STEP')
        a(f's_bitcmp1_b32 s{sLag}, s{sJ}')
        a('s_cbranch_scc1 L_NOSTUB1')
        self.stub()
        a.label('L_NOSTUB1')
        a(f's_cmp_eq_u32 s{sJ}, 9')
        a(f's_cselect_b32 s{sdV}, s{sWrap}, s{sP16k}')
        a(f's_bitcmp1_b32 s{sExtra}, s{sJ}')
        a('s_cbranch_scc1 L_ABC')
        a.c('AB_n'); self.block('A', 'B', vreads=True, kreads=True, dma=True)
        self.step_scalars()
        a(f's_add_u32 s{sT1}, s{sJ}, 1')
        a(f's_bitcmp1_b32 s{sLag}, s{sT1}')
        a('s_cbranch_scc0 L_NOSTUB2')
        self.stub()
        a.label('L_NOSTUB2')
        a(f's_cmp_eq_u32 s{sJ}, 15')
        a('s_cbranch_scc1 L_DRAINB')
        a.c('BA'); self.block('B', 'A', pre_wait_k=True, kadv=True)
        a(f's_add_u32 s{sJ}, s{sJ}, 1')
        a('s_branch L_STEP')
        a.label('L_ABC')
        a.c('AB_c'); self.block('A', 'B', vreads=True, dma=True)
        self.step_scalars()
        a.c('BC'); self.block('B', 'C', kreads=True)
        a(f's_add_u32 s{sT1}, s{sJ}, 1')
        a(f's_bitcmp1_b32 s{sLag}, s{sT1}')
        a('s_cbranch_scc0 L_NOSTUB3')
        self.stub()
        a.label('L_NOSTUB3')
        a(f's_cmp_eq_u32 s{sJ}, 15')
        a('s_cbranch_scc1 L_DRAINC')
        a.c('CA'); self.block('C', 'A', pre_wait_k=True, kadv=True)
        a(f's_add_u32 s{sJ}, s{sJ}, 1')
        a('s_branch L_STEP')
        a.label('L_DRAINB')
        self.drain('B')
        a('s_branch L_EPI')
        a.label('L_DRAINC')
        self.drain('C')
        a.label('L_EPI')
        self.epilogue()
        a.label('L_end')
        a('s_endpgm')

    def epilogue(self):
        a = self
        o = self.opt
        st = o.get('stflag', '')
        st = f' {st}' if st else ''
        PART = 16896
        LREG = 0
        PB = 512
        STG = 12 * 8192
        for i, X in enumerate('ABC'): a(f'v_mov_b32 v{T+i}, v{LL[X]}')
        a('s_nop 0')
        for i, X in enumerate('ABC'): a(f'v_permlane32_swap_b32 v{LL[X]}, v{T+i}')
        for i, X in enumerate('ABC'): a(f'v_add_f32 v{LL[X]}, v{LL[X]}, v{T+i}')
        a(f'v_cmp_ngt_f32 vcc, s{sThr}, v{lA}')
        a(f'v_mov_b32 v{T+3}, 0x7f800000')
        a(f'v_rcp_f32 v{T+4}, v{lA}')
        a(f'v_cndmask_b32 v{lC}, v{lC}, v{T+3}, vcc')
        a(f'v_cmp_ngt_f32 vcc, s{sThr}, v{lB}')
        a(f'v_rcp_f32 v{T+6}, v{lB}')
        a('s_nop 0')
        a(f'v_cndmask_b32 v{lC}, v{lC}, v{T+3}, vcc')
        a(f'v_and_b32 v{T+8}, 31, v{vLane}')
        a(f'v_lshrrev_b32 v{T+9}, 5, v{vLane}')
        a(f's_mul_i32 s{sT1}, s{sW}, {PART}')
        a(f's_add_u32 s{sT1}, s{sT1}, {PB}')
        a(f'v_mul_u32_u24 v{T+10}, 528, v{T+8}')
        a(f'v_lshl_add_u32 v{T+10}, v{T+9}, 4, v{T+10}')
        a(f'v_add_u32 v{T+10}, s{sT1}, v{T+10}')
        a(f's_lshl_b32 s{sT1}, s{sW}, 7')
        a(f'v_lshlrev_b32 v{T+11}, 2, v{T+8}')
        a(f'v_add_u32 v{T+11}, s{sT1}, v{T+11}')
        a(f'ds_write_b32 v{T+11}, v{lC}')
        a('s_nop 3')
        a('s_nop 7')
        for dt in range(4):
            for g in range(4):
                a(f'ds_write_b128 v{T+10}, {ar(aOC+16*dt+4*g,4)} offset:{(8*dt+2*g)*16}')
        a(f's_lshl_b32 s{sT1}, s{sW}, 14')
        a(f's_add_u32 s{sT1}, s{sT1}, {STG}')
        a(f'v_mul_u32_u24 v{T+12}, 272, v{T+8}')
        a(f'v_lshl_add_u32 v{T+12}, v{T+9}, 3, v{T+12}')
        a(f'v_add_u32 v{T+12}, s{sT1}, v{T+12}')
        a(f'v_lshrrev_b32 v{T+13}, 4, v{vLane}')
        a(f'v_mul_u32_u24 v{T+13}, 272, v{T+13}')
        a(f'v_and_b32 v{T+14}, 15, v{vLane}')
        a(f'v_lshl_add_u32 v{T+13}, v{T+14}, 4, v{T+13}')
        a(f'v_add_u32 v{T+13}, s{sT1}, v{T+13}')
        a(f'v_lshlrev_b32 v{T+15}, 4, v{vLane}')
        for X, O, rc, toff in (('A', OA, T+4, 0), ('B', OB, T+6, 8192)):
            for dt in range(4):
                for g in range(4):
                    r = O + 16 * dt + 4 * g
                    a(f'v_pk_mul_f32 {vr(r,2)}, {vr(r,2)}, {vr(rc,2)} op_sel_hi:[1,0]')
                    a(f'v_pk_mul_f32 {vr(r+2,2)}, {vr(r+2,2)}, {vr(rc,2)} op_sel_hi:[1,0]')
                    a(f'v_cvt_pk_bf16_f32 v{r}, v{r}, v{r+1}')
                    a(f'v_cvt_pk_bf16_f32 v{r+1}, v{r+2}, v{r+3}')
                    a(f'ds_write_b64 v{T+12}, {vr(r,2)} offset:{(4*dt+g)*16}')
            for i in range(8):
                a(f'ds_read_b128 {vr(O+4*i,4)}, v{T+13} offset:{i*4*272}')
            a(f's_lshl_b32 s{sT2}, s{sW}, 14')
            a(f's_add_u32 s{sT2}, s{sT2}, {toff}')
            a(f's_add_u32 s{sT3}, s{sT2}, 4096')
            for i in range(8):
                a(f's_waitcnt lgkmcnt({7-i})')
                so = sT2 if i < 4 else sT3
                off = f' offset:{(i&3)*1024}' if (i & 3) else ''
                a(f'buffer_store_dwordx4 {vr(O+4*i,4)}, v{T+15}, {sr(sO,4)}, s{so} offen{off}{st}')
        a('s_waitcnt lgkmcnt(0)')
        a('s_barrier')
        a(f'v_lshlrev_b32 v{T+11}, 2, v{T+8}')
        for p in range(4): a(f'ds_read_b32 v{T+p}, v{T+11} offset:{p*128}')
        a(f's_lshl_b32 s{sT1}, s{sW}, 3')
        a(f'v_lshrrev_b32 v{T+9}, 4, v{vLane}')
        a(f'v_add_u32 v{T+9}, s{sT1}, v{T+9}')
        a(f'v_lshlrev_b32 v{T+10}, 2, v{T+9}')
        for i in range(2):
            for p in range(4): a(f'ds_read_b32 v{128+4*i+p}, v{T+10} offset:{p*128 + i*16}')
        a(f'v_mul_u32_u24 v{T+12}, 528, v{T+9}')
        a(f'v_lshl_add_u32 v{T+12}, v{T+14}, 5, v{T+12}')
        for i in range(2):
            for p in range(4):
                for hh in range(2):
                    a(f'ds_read_b128 {vr(144+((i*4+p)*2+hh)*4,4)}, v{T+12} offset:{PB + p*PART + i*4*528 + hh*16}')
        a('s_waitcnt lgkmcnt(0)')
        a(f'v_add_f32 v{T}, v{T}, v{T+1}'); a(f'v_add_f32 v{T+2}, v{T+2}, v{T+3}'); a(f'v_add_f32 v{T}, v{T}, v{T+2}')
        a(f'v_cmp_ngt_f32 vcc, s{sThr}, v{T}')
        a(f's_cmp_lg_u32 s{sPass}, 0')
        a('s_cbranch_scc1 L_FIN')
        a('s_nop 1')
        a('s_cbranch_vccz L_FIN')
        a(f's_mov_b32 s{sPass}, 1')
        a(f's_mov_b32 s{sMJ}, 0')
        for X in 'ABC': a(f'v_mov_b32 v{MM[X]}, 0xff800000')
        a('s_branch L_FB_LOAD')
        a.label('L_FIN')
        for i in range(2):
            b = 128 + 4 * i
            a(f'v_add_f32 v{b}, v{b}, v{b+1}'); a(f'v_add_f32 v{b+2}, v{b+2}, v{b+3}'); a(f'v_add_f32 v{b}, v{b}, v{b+2}')
            a(f'v_rcp_f32 v{b}, v{b}')
        for i in range(2):
            base = 144 + i * 32
            for e in range(8):
                a(f'v_add_f32 v{base+e}, v{base+e}, v{base+8+e}')
                a(f'v_add_f32 v{base+16+e}, v{base+16+e}, v{base+24+e}')
                a(f'v_add_f32 v{base+e}, v{base+e}, v{base+16+e}')
            for e in range(8):
                a(f'v_mul_f32 v{base+e}, v{base+e}, v{128+4*i}')
            for e in range(4):
                a(f'v_cvt_pk_bf16_f32 v{base+e}, v{base+2*e}, v{base+2*e+1}')
        a(f's_lshl_b32 s{sT2}, s{sW}, 11')
        a(f's_add_u32 s{sT2}, s{sT2}, {8*8192}')
        for i in range(2):
            off = f' offset:{i*1024}' if i else ''
            a(f'buffer_store_dwordx4 {vr(144+i*32,4)}, v{T+15}, {sr(sO,4)}, s{sT2} offen{off}{st}')

    def text(self):
        hdr = f"""; GQA softmax attention forward, gfx950. Generated by gen/gen.py (hand-written generator).
; @launch grid=(256,1,1) block=(256,1,1) lds=163840
.amdgcn_target "amdgcn-amd-amdhsa--gfx950"
.text
.globl {NAME}
.p2align 8
.type {NAME},@function
{NAME}:
"""
        ftr = f"""
.section .rodata,"a"
.p2align 6
.amdhsa_kernel {NAME}
  .amdhsa_next_free_vgpr 512
  .amdhsa_next_free_sgpr 64
  .amdhsa_accum_offset 256
  .amdhsa_group_segment_fixed_size 0
  .amdhsa_kernarg_size 48
  .amdhsa_user_sgpr_count 2
  .amdhsa_user_sgpr_kernarg_segment_ptr 1
  .amdhsa_system_sgpr_workgroup_id_x 1
.end_amdhsa_kernel
"""
        return hdr + '\n'.join(l for l in self.L if l is not None) + ftr

def make(path, **opt):
    g = Gen(opt)
    g.build()
    g.L = [l for l in g.L if l is not None]
    errs = check(g.L, 'linear')
    for e in errs: print('HAZARD', e)
    open(path, 'w').write(g.text())
    return g

if __name__ == '__main__':
    make('standalone__gqa_softmax__near_ridge.s')
    make('k_nt.s', ldflag='nt')
```

```python
import sys, math, struct
from hazard import check

NAME = 'standalone__gqa_softmax__near_ridge_kernel'

def f2u(x): return struct.unpack('<I', struct.pack('<f', x))[0]

OA, OB = 0, 64
SA, SB, SC = 128, 144, 160
NA, NB, NC = 176, 192, 208
lA, lB, lC = 224, 225, 226
vKr0, vKr1, vVr = 227, 228, 229
vDKa, vDKb, vDV = 230, 231, 232
mA, mB, mC = 233, 234, 235
vKr0b, vVrb = 236, 237
vLane = 238
T = 240
aOC, aQA, aQB, aQC, aKF, aVF = 0, 64, 96, 128, 160, 192

S = {'A': SA, 'B': SB, 'C': SC}
NEG = {'A': NA, 'B': NB, 'C': NC}
LL = {'A': lA, 'B': lB, 'C': lC}
MM = {'A': mA, 'B': mB, 'C': mC}
QQ = {'A': aQA, 'B': aQB, 'C': aQC}

sQ, sK, sV, sO = 12, 16, 20, 24
sW, sW2k, sJ, sLag, sExtra = 28, 29, 30, 31, 32
sC = 34
sSoff, sM0, sdV, sdK = 36, 37, 38, 39
sPass, sT1, sThr, sPair, sMask, sT2, sT3 = 40, 41, 42, 43, 44, 45, 46
sMJ = 47
sP16k, sWrap = 48, 49

def vr(b, n): return f'v[{b}:{b+n-1}]'
def ar(b, n): return f'a[{b}:{b+n-1}]'
def sr(b, n): return f's[{b}:{b+n-1}]'

class Gen:
    def __init__(self, opt):
        self.L = []
        self.opt = opt
    def __call__(self, s): self.L.append('  ' + s)
    def label(self, s): self.L.append(s + ':')
    def c(self, s): self.L.append('  ; ' + s)

    def stamp(self, idx, real=False):
        if not self.opt.get('stamps'): return
        self('s_memrealtime s[50:51]' if (real or self.opt.get('allreal')) else 's_memtime s[50:51]')
        self('s_waitcnt lgkmcnt(0)')
        self(f'v_writelane_b32 v239, s50, {idx}')

    def dma(self, vo, srd, soff, off=0, flag=None):
        fl = self.opt.get('ldflag', '') if flag is None else flag
        o = f' offset:{off}' if off else ''
        fl = f' {fl}' if fl else ''
        return f'buffer_load_dwordx4 v{vo}, {sr(srd,4)}, {soff} offen{o}{fl} lds'

    def issue_kv_tile(self, n):
        j, isv = n >> 1, n & 1
        slot = n % 20
        self(f's_add_u32 m0, s{sW2k}, {slot * 8192}')
        self(f's_mov_b32 s{sT1}, {j * 8192}')
        if isv:
            self(self.dma(vDV, sV, f's{sT1}'))
            self(self.dma(vDV, sV, f's{sT1}', 1024))
        else:
            self(self.dma(vDKa, sK, f's{sT1}'))
            self(self.dma(vDKb, sK, f's{sT1}', 1024))

    def mfma_qk(self, X, t, first_c):
        c = first_c if t == 0 else vr(S[X], 16)
        return f'v_mfma_f32_32x32x16_bf16 {vr(S[X],16)}, {ar(aKF+4*t,4)}, {ar(QQ[X]+4*t,4)}, {c}'

    def mfma_pv(self, X, k):
        s, dt = k >> 2, k & 3
        if X == 'C': o = ar(aOC + 16 * dt, 16)
        else: o = vr((OA if X == 'A' else OB) + 16 * dt, 16)
        return f'v_mfma_f32_32x32x16_bf16 {o}, {ar(aVF+4*k,4)}, {vr(S[X]+4*s,4)}, {o}'

    def exp(self, X, r): return f'v_exp_f32 v{S[X]+r}, v{S[X]+r}'
    def add(self, X, r): return f'v_add_f32 v{LL[X]}, v{LL[X]}, v{S[X]+r}'
    def cvt(self, X, k): return f'v_cvt_pk_bf16_f32 v{S[X]+k}, v{S[X]+2*k}, v{S[X]+2*k+1}'
    def kread(self, t):
        return f'ds_read_b128 {ar(aKF+4*t,4)}, v{vKr0 if t % 2 == 0 else vKr1} offset:{(t>>1)*256}'
    def vread(self, k, e):
        s, dt = k >> 2, k & 3
        return f'ds_read_b64_tr_b16 {ar(aVF+4*k+2*e,2)}, v{vVr} offset:{(4*s+2*e)*1024+dt*256}'

    def block(self, cur, nxt, vreads=False, kreads=False, dma=False, kadv=False, pre_wait_k=False):
        gaps = [[] for _ in range(16)]
        pre = [[] for _ in range(16)]
        for g in range(10): gaps[g].append(self.exp(cur, g + 6))
        gaps[0].append(self.add(cur, 5))
        for g in range(1, 11): gaps[g].append(self.add(cur, g + 5))
        for g in range(11, 16): gaps[g].append(self.add(nxt, g - 11))
        gaps[0].append(self.cvt(cur, 2)); gaps[2].append(self.cvt(cur, 3)); gaps[4].append(self.cvt(cur, 4))
        gaps[6].append(self.cvt(cur, 5)); gaps[8].append(self.cvt(cur, 6)); gaps[10].append(self.cvt(cur, 7))
        gaps[12].append(self.cvt(nxt, 0)); gaps[14].append(self.cvt(nxt, 1))
        for g in range(10, 16): gaps[g].append(self.exp(nxt, g - 10))
        if vreads:
            for k in range(8):
                gaps[k].append(self.vread(k, 0)); gaps[k].append(self.vread(k, 1))
            pre[8].append('s_waitcnt lgkmcnt(8)')
            pre[12].append(f's_waitcnt lgkmcnt({4 if kreads else 0})')
        if kreads:
            for t in range(8): gaps[8 + t].append(self.kread(t))
        if pre_wait_k:
            pre[0].append('s_waitcnt lgkmcnt(4)')
            pre[4].append('s_waitcnt lgkmcnt(0)')
        if vreads:
            gaps[9].append(f'v_add_u32 v{vVr}, s{sdV}, v{vVr}')
        if dma:
            gaps[8].insert(0, f's_mov_b32 m0, s{sM0}')
            gaps[9].append(self.dma(vDKa, sK, f's{sSoff}'))
            gaps[11].append(self.dma(vDKb, sK, f's{sSoff}', 1024))
            gaps[12].insert(0, f's_add_u32 m0, s{sM0}, 8192')
            gaps[13].append(self.dma(vDV, sV, f's{sSoff}'))
            gaps[15].append(self.dma(vDV, sV, f's{sSoff}', 1024))
        if kadv:
            gaps[1].append(f'v_add_u32 v{vKr0}, s{sdK}, v{vKr0}')
            gaps[3].append(f'v_add_u32 v{vKr1}, s{sdK}, v{vKr1}')
        out = []
        for g in range(16):
            out += pre[g]
            out.append(self.mfma_qk(nxt, g, vr(NEG[nxt], 16)) if g < 8 else self.mfma_pv(cur, g - 8))
            out += gaps[g]
        o = self.opt
        if o.get('no_dma'): out = [x for x in out if not x.startswith('buffer_load')]
        if o.get('no_lds'): out = [x for x in out if not x.startswith('ds_read')]
        if o.get('no_exp'): out = [x for x in out if not x.startswith('v_exp')]
        if o.get('no_add'): out = [x for x in out if not x.startswith('v_add_f32')]
        if o.get('no_cvt'): out = [x for x in out if not x.startswith('v_cvt')]
        if o.get('no_wait'): out = [x for x in out if not x.startswith('s_waitcnt')]
        for s in out: self(s)

    def step_scalars(self):
        self(f's_add_u32 s{sSoff}, s{sSoff}, 8192')
        self(f's_add_u32 s{sPair}, s{sPair}, 16384')
        self(f's_cmp_eq_u32 s{sPair}, 163840')
        self(f's_cselect_b32 s{sPair}, 0, s{sPair}')
        self(f's_add_u32 s{sM0}, s{sPair}, s{sW2k}')
        self(f's_cmp_ge_u32 s{sSoff}, 131072')
        self(f's_cselect_b32 s{sM0}, 0x30000, s{sM0}')
        self(f's_cmp_eq_u32 s{sJ}, 8')
        self(f's_cselect_b32 s{sdK}, s{sWrap}, s{sP16k}')

    def stub(self):
        self('s_waitcnt vmcnt(30)')
        if not self.opt.get('no_bar'): self('s_barrier')

    def drain(self, cur):
        e, a, c = self.exp, self.add, self.cvt
        X = cur
        seq = [a(X,5), c(X,2), e(X,6), e(X,7), e(X,8), a(X,6), a(X,7), c(X,3), e(X,9), a(X,8),
               self.mfma_pv(X,0), e(X,10), e(X,11), a(X,9), c(X,4),
               self.mfma_pv(X,1), e(X,12), e(X,13), a(X,10), a(X,11), c(X,5),
               self.mfma_pv(X,2), e(X,14), e(X,15), a(X,12), a(X,13), c(X,6),
               self.mfma_pv(X,3), a(X,14), a(X,15), c(X,7), 's_nop 1',
               self.mfma_pv(X,4), self.mfma_pv(X,5), self.mfma_pv(X,6), self.mfma_pv(X,7)]
        for s in seq: self(s)

    def qprep(self, dstA, base_expr):
        self(f'v_add_u32 v{T}, {base_expr}, v{vKr0b}')
        self(f'v_xor_b32 v{T+1}, 32, v{T}')
        for t in range(8):
            self(f'ds_read_b128 {vr(4*t,4)}, v{T + (t & 1)} offset:{(t>>1)*256}')
        for r in range(32):
            if r % 4 == 0: self(f's_waitcnt lgkmcnt({7 - r // 4})')
            lo = 32 + 2 * (r % 8)
            self(f'v_lshlrev_b32 v{lo}, 16, v{r}')
            self(f'v_and_b32 v{lo+1}, s{sMask}, v{r}')
            self(f'v_pk_mul_f32 {vr(lo,2)}, {vr(lo,2)}, {sr(sC,2)}')
            self(f'v_cvt_pk_bf16_f32 v{r}, v{lo}, v{lo+1}')
            self(f'v_accvgpr_write_b32 a{dstA+r}, v{r}')

    def maxtree(self, X):
        out = []
        for i in range(8):
            out.append(f'v_max3_f32 v{MM[X]}, v{MM[X]}, v{S[X]+2*i}, v{S[X]+2*i+1}')
        return out

    def build(self):
        o = self.opt
        a = self
        a('s_cmp_ge_u32 s2, 256')
        a('s_cbranch_scc1 L_end')
        a('s_load_dwordx4 s[4:7], s[0:1], 0')
        a('s_load_dwordx4 s[8:11], s[0:1], 16')
        if o.get('stamps'):
            a(f's_load_dwordx2 s[54:55], s[0:1], {32 if o.get("stamps") == "dbg" else 40}')
            a('v_mov_b32 v239, 0')
            self.stamp(0); self.stamp(1, real=True)
        a(f'v_and_b32 v{vLane}, 63, v0')
        a(f'v_lshrrev_b32 v{T}, 6, v0')
        a(f's_mov_b32 s{sMask}, 0xffff0000')
        a(f'v_readfirstlane_b32 s{sW}, v{T}')
        a(f'v_bfe_u32 v{T+1}, v{vLane}, 2, 2')
        a(f'v_lshlrev_b32 v{T+1}, 8, v{T+1}')
        a(f'v_lshrrev_b32 v{T+2}, 4, v{vLane}')
        a(f'v_lshl_add_u32 v{T+1}, v{T+2}, 6, v{T+1}')
        a(f'v_and_b32 v{T+2}, 3, v{vLane}')
        for x in range(4):
            a(f'v_xor_b32 v{T+3}, {x}, v{T+2}')
            a(f'v_lshl_add_u32 v{T+4+x}, v{T+3}, 4, v{T+1}')
        a(f's_lshl_b32 s{sW2k}, s{sW}, 11')
        a(f's_lshl_b32 s{sT1}, s{sW}, 1')
        a(f's_and_b32 s{sT1}, s{sT1}, 3')
        a(f's_or_b32 s{sT2}, s{sT1}, 1')
        a(f'v_add_u32 v{vDV}, s{sW2k}, v{T+4}')
        a(f'v_xor_b32 v{T+3}, s{sT1}, v{T+2}')
        a(f'v_lshl_add_u32 v{vDKa}, v{T+3}, 4, v{T+1}')
        a(f'v_add_u32 v{vDKa}, s{sW2k}, v{vDKa}')
        a(f'v_xor_b32 v{T+3}, s{sT2}, v{T+2}')
        a(f'v_lshl_add_u32 v{vDKb}, v{T+3}, 4, v{T+1}')
        a(f'v_add_u32 v{vDKb}, s{sW2k}, v{vDKb}')
        a('s_waitcnt lgkmcnt(0)')
        a(f's_mul_i32 s{sT3}, s2, 73728')
        a(f's_add_u32 s{sQ}, s4, s{sT3}'); a(f's_addc_u32 s{sQ+1}, s5, 0'); a(f's_mov_b32 s{sQ+2}, 73728'); a(f's_mov_b32 s{sQ+3}, 0x20000')
        a(f's_add_u32 s{sO}, s10, s{sT3}'); a(f's_addc_u32 s{sO+1}, s11, 0'); a(f's_mov_b32 s{sO+2}, 73728'); a(f's_mov_b32 s{sO+3}, 0x20000')
        a(f's_lshl_b32 s{sT3}, s2, 17')
        a(f's_add_u32 s{sK}, s6, s{sT3}'); a(f's_addc_u32 s{sK+1}, s7, 0'); a(f's_mov_b32 s{sK+2}, 131072'); a(f's_mov_b32 s{sK+3}, 0x20000')
        a(f's_add_u32 s{sV}, s8, s{sT3}'); a(f's_addc_u32 s{sV+1}, s9, 0'); a(f's_mov_b32 s{sV+2}, 131072'); a(f's_mov_b32 s{sV+3}, 0x20000')
        a.c('K0')
        self.issue_kv_tile(0)
        a.c('QC -> slot 11')
        a(f's_add_u32 m0, s{sW2k}, {11*8192}')
        a(f's_mov_b32 s{sT1}, {8*8192}')
        a(self.dma(vDKa, sQ, f's{sT1}')); a(self.dma(vDKb, sQ, f's{sT1}', 1024))
        a.c('QA -> slot 12+w, QB -> slot 16+w')
        a(f's_lshl_b32 s{sT2}, s{sW}, 13')
        a(f's_lshl_b32 s{sT3}, s{sW}, 14')
        for X, slot0, toff in (('A', 12, 0), ('B', 16, 8192)):
            for half in range(2):
                a(f's_add_u32 m0, s{sT2}, {slot0*8192 + half*4096}')
                a(f's_add_u32 s{sT1}, s{sT3}, {toff + half*4096}')
                for x in range(4):
                    a(self.dma(T + 4 + x, sQ, f's{sT1}', x * 1024))
        for n in range(1, 11): self.issue_kv_tile(n)
        self.stamp(2)
        a(f'v_and_b32 v{T}, 31, v{vLane}')
        a(f'v_lshrrev_b32 v{T+1}, 5, v{vLane}')
        a(f'v_lshrrev_b32 v{T+2}, 2, v{T}')
        a(f'v_lshlrev_b32 v{vKr0b}, 10, v{T+2}')
        a(f'v_and_b32 v{T+3}, 3, v{T}')
        a(f'v_lshl_add_u32 v{vKr0b}, v{T+3}, 6, v{vKr0b}')
        a(f'v_and_b32 v{T+2}, 3, v{T+2}')
        a(f'v_xor_b32 v{T+2}, v{T+1}, v{T+2}')
        a(f'v_lshl_add_u32 v{vKr0b}, v{T+2}, 4, v{vKr0b}')
        a(f'v_lshlrev_b32 v{vVrb}, 10, v{T+1}')
        a(f'v_bfe_u32 v{T+2}, v{vLane}, 2, 2')
        a(f'v_lshl_add_u32 v{vVrb}, v{T+2}, 6, v{vVrb}')
        a(f'v_bfe_u32 v{T+2}, v{vLane}, 4, 1')
        a(f'v_lshl_add_u32 v{vVrb}, v{T+2}, 5, v{vVrb}')
        a(f'v_and_b32 v{T+2}, 3, v{vLane}')
        a(f'v_lshl_add_u32 v{vVrb}, v{T+2}, 3, v{vVrb}')
        a(f'v_add_u32 v{vVrb}, 8192, v{vVrb}')
        cval = f2u(math.log2(math.e) / math.sqrt(128.0))
        a(f's_mov_b32 s{sC}, {cval:#x}'); a(f's_mov_b32 s{sC+1}, {cval:#x}')
        a(f's_mov_b32 s{sThr}, {f2u(2.0**32):#x}')
        a(f's_mov_b32 s{sPass}, 0')
        a(f's_mov_b32 s{sP16k}, 16384')
        a(f's_mov_b32 s{sWrap}, {(-147456) & 0xffffffff:#x}')
        a(f's_lshl_b32 s{sExtra}, 1, s{sW}')
        a(f's_mul_i32 s{sExtra}, s{sExtra}, 0x11111')
        a(f's_add_u32 s{sT1}, s{sW}, 1')
        a(f's_lshl_b32 s{sLag}, 15, s{sT1}')
        a(f's_and_b32 s{sLag}, s{sLag}, 15')
        a(f's_mul_i32 s{sLag}, s{sLag}, 0x11111')
        for X in 'ABC': a(f'v_mov_b32 v{MM[X]}, 0xff800000')
        a('s_waitcnt vmcnt(28)')
        self.stamp(3)
        a('s_barrier')
        a(f's_lshl_b32 s{sT2}, s{sW}, 13')
        a(f's_add_u32 s{sT1}, s{sT2}, {12*8192}')
        self.qprep(aQA, f's{sT1}')
        a(f's_mov_b32 s{sT1}, {11*8192}')
        self.qprep(aQC, f's{sT1}')
        self.stamp(4)
        a('s_waitcnt vmcnt(20)')
        self.stamp(5)
        a(f's_add_u32 s{sT1}, s{sT2}, {16*8192}')
        self.qprep(aQB, f's{sT1}')
        a(f's_mov_b32 s{sMJ}, 0')
        a.label('L_MAXBODY')
        a(f'v_mov_b32 v{vKr0}, v{vKr0b}')
        a(f'v_xor_b32 v{vKr1}, 32, v{vKr0b}')
        for t in range(8): a(self.kread(t))
        a('s_waitcnt lgkmcnt(0)')
        for t in range(8): a(self.mfma_qk('A', t, '0'))
        for t in range(8): a(self.mfma_qk('C', t, '0'))
        trA = self.maxtree('A')
        for t in range(8):
            a(self.mfma_qk('B', t, '0'))
            if t >= 4: a(trA[2*(t-4)]); a(trA[2*(t-4)+1])
        for s in self.maxtree('C'): a(s)
        a('s_nop 3')
        for s in self.maxtree('B'): a(s)
        a(f's_cmp_eq_u32 s{sPass}, 0')
        a('s_cbranch_scc1 L_MAXDONE')
        a(f's_add_u32 s{sMJ}, s{sMJ}, 1')
        a(f's_cmp_eq_u32 s{sMJ}, 16')
        a('s_cbranch_scc1 L_FB_RESTART')
        a.label('L_FB_LOAD')
        a('s_barrier')
        a(f's_mov_b32 m0, s{sW2k}')
        a(f's_lshl_b32 s{sT1}, s{sMJ}, 13')
        a(self.dma(vDKa, sK, f's{sT1}')); a(self.dma(vDKb, sK, f's{sT1}', 1024))
        a('s_waitcnt vmcnt(0)')
        a('s_barrier')
        a('s_branch L_MAXBODY')
        a.label('L_FB_RESTART')
        a('s_barrier')
        for n in range(0, 11): self.issue_kv_tile(n)
        a('s_waitcnt vmcnt(20)')
        a('s_barrier')
        for t in range(8): a(self.kread(t))
        a.label('L_MAXDONE')
        for i, X in enumerate('ABC'):
            a(f'v_mov_b32 v{T+i}, v{MM[X]}')
        a('s_nop 0')
        for i, X in enumerate('ABC'):
            a(f'v_permlane32_swap_b32 v{MM[X]}, v{T+i}')
        for i, X in enumerate('ABC'):
            a(f'v_max_f32 v{MM[X]}, v{MM[X]}, v{T+i}')
        for X in 'ABC':
            a(f'v_sub_f32 v{NEG[X]}, 0, v{MM[X]}')
            for r in range(1, 16): a(f'v_mov_b32 v{NEG[X]+r}, v{NEG[X]}')
        for r in range(128): a(f'v_mov_b32 v{r}, 0')
        for r in range(64): a(f'v_accvgpr_write_b32 a{aOC+r}, 0')
        for X in 'ABC': a(f'v_mov_b32 v{LL[X]}, 0')
        self.stamp(6)
        a('s_waitcnt vmcnt(16) lgkmcnt(0)')
        a('s_barrier')
        self.stamp(7)
        for n in range(11, 18): self.issue_kv_tile(n)
        for t in range(8): a(self.mfma_qk('A', t, vr(NA, 16)))
        a(f's_mov_b32 s{sJ}, 0')
        a(f's_mov_b32 s{sSoff}, {9*8192}')
        a(f's_mov_b32 s{sPair}, {9*16384}')
        a(f's_add_u32 s{sM0}, s{sPair}, s{sW2k}')
        a(f's_mov_b32 s{sdV}, 16384')
        a(f'v_add_u32 v{vKr0}, 16384, v{vKr0b}')
        a(f'v_xor_b32 v{vKr1}, 32, v{vKr0}')
        a(f'v_mov_b32 v{vVr}, v{vVrb}')
        a('s_nop 7')
        e, ad, cv = self.exp, self.add, self.cvt
        for s in [e('A',0), e('A',1), e('A',2), ad('A',0), ad('A',1), cv('A',0), e('A',3), e('A',4), ad('A',2), ad('A',3), cv('A',1), e('A',5), ad('A',4)]:
            a(s)
        a('s_branch L_NOSTUB1')
        a.label('L_STEP')
        a(f's_bitcmp1_b32 s{sLag}, s{sJ}')
        a('s_cbranch_scc1 L_NOSTUB1')
        self.stub()
        a.label('L_NOSTUB1')
        if o.get('stamps'):
            a(f's_add_u32 m0, s{sJ}, 16')
            self.stamp('m0')
        a(f's_cmp_eq_u32 s{sJ}, 9')
        a(f's_cselect_b32 s{sdV}, s{sWrap}, s{sP16k}')
        a(f's_bitcmp1_b32 s{sExtra}, s{sJ}')
        a('s_cbranch_scc1 L_ABC')
        a.c('AB_n'); self.block('A', 'B', vreads=True, kreads=True, dma=True)
        self.step_scalars()
        a(f's_add_u32 s{sT1}, s{sJ}, 1')
        a(f's_bitcmp1_b32 s{sLag}, s{sT1}')
        a('s_cbranch_scc0 L_NOSTUB2')
        self.stub()
        a.label('L_NOSTUB2')
        a(f's_cmp_eq_u32 s{sJ}, 15')
        a('s_cbranch_scc1 L_DRAINB')
        a.c('BA'); self.block('B', 'A', pre_wait_k=True, kadv=True)
        a(f's_add_u32 s{sJ}, s{sJ}, 1')
        a('s_branch L_STEP')
        a.label('L_ABC')
        a.c('AB_c'); self.block('A', 'B', vreads=True, dma=True)
        self.step_scalars()
        a.c('BC'); self.block('B', 'C', kreads=True)
        a(f's_add_u32 s{sT1}, s{sJ}, 1')
        a(f's_bitcmp1_b32 s{sLag}, s{sT1}')
        a('s_cbranch_scc0 L_NOSTUB3')
        self.stub()
        a.label('L_NOSTUB3')
        a(f's_cmp_eq_u32 s{sJ}, 15')
        a('s_cbranch_scc1 L_DRAINC')
        a.c('CA'); self.block('C', 'A', pre_wait_k=True, kadv=True)
        a(f's_add_u32 s{sJ}, s{sJ}, 1')
        a('s_branch L_STEP')
        a.label('L_DRAINB')
        self.drain('B')
        a('s_branch L_EPI')
        a.label('L_DRAINC')
        self.drain('C')
        a.label('L_EPI')
        self.stamp(32)
        self.epilogue()
        if o.get('stamps'):
            self.stamp(34)
            a('s_waitcnt vmcnt(0)')
            self.stamp(35); self.stamp(36, real=True)
            a('s_mov_b32 s56, s54'); a('s_and_b32 s57, s55, 0xffff'); a(f's_mov_b32 s58, {256 if o.get("stamps") == "dbg" else 0x1000000}'); a('s_mov_b32 s59, 0x20000')
            a(f's_lshl_b32 s60, s2, 2'); a(f's_add_u32 s60, s60, s{sW}'); a('s_lshl_b32 s60, s60, 8')
            a(f'v_lshlrev_b32 v{T}, 2, v{vLane}')
            a(f'buffer_store_dword v239, v{T}, s[56:59], s60 offen')
        a.label('L_end')
        a('s_endpgm')

    def epilogue(self):
        a = self
        o = self.opt
        st = o.get('stflag', '')
        st = f' {st}' if st else ''
        PART = 16896
        LREG = 0
        PB = 512
        STG = 12 * 8192
        for i, X in enumerate('ABC'): a(f'v_mov_b32 v{T+i}, v{LL[X]}')
        a('s_nop 0')
        for i, X in enumerate('ABC'): a(f'v_permlane32_swap_b32 v{LL[X]}, v{T+i}')
        for i, X in enumerate('ABC'): a(f'v_add_f32 v{LL[X]}, v{LL[X]}, v{T+i}')
        a(f'v_cmp_ngt_f32 vcc, s{sThr}, v{lA}')
        a(f'v_mov_b32 v{T+3}, 0x7f800000')
        a(f'v_rcp_f32 v{T+4}, v{lA}')
        a(f'v_cndmask_b32 v{lC}, v{lC}, v{T+3}, vcc')
        a(f'v_cmp_ngt_f32 vcc, s{sThr}, v{lB}')
        a(f'v_rcp_f32 v{T+6}, v{lB}')
        a('s_nop 0')
        a(f'v_cndmask_b32 v{lC}, v{lC}, v{T+3}, vcc')
        a(f'v_and_b32 v{T+8}, 31, v{vLane}')
        a(f'v_lshrrev_b32 v{T+9}, 5, v{vLane}')
        a(f's_mul_i32 s{sT1}, s{sW}, {PART}')
        a(f's_add_u32 s{sT1}, s{sT1}, {PB}')
        a(f'v_mul_u32_u24 v{T+10}, 528, v{T+8}')
        a(f'v_lshl_add_u32 v{T+10}, v{T+9}, 4, v{T+10}')
        a(f'v_add_u32 v{T+10}, s{sT1}, v{T+10}')
        a(f's_lshl_b32 s{sT1}, s{sW}, 7')
        a(f'v_lshlrev_b32 v{T+11}, 2, v{T+8}')
        a(f'v_add_u32 v{T+11}, s{sT1}, v{T+11}')
        a(f'ds_write_b32 v{T+11}, v{lC}')
        a('s_nop 3')
        a('s_nop 7')
        for dt in range(4):
            for g in range(4):
                a(f'ds_write_b128 v{T+10}, {ar(aOC+16*dt+4*g,4)} offset:{(8*dt+2*g)*16}')
        a(f's_lshl_b32 s{sT1}, s{sW}, 14')
        a(f's_add_u32 s{sT1}, s{sT1}, {STG}')
        a(f'v_mul_u32_u24 v{T+12}, 272, v{T+8}')
        a(f'v_lshl_add_u32 v{T+12}, v{T+9}, 3, v{T+12}')
        a(f'v_add_u32 v{T+12}, s{sT1}, v{T+12}')
        a(f'v_lshrrev_b32 v{T+13}, 4, v{vLane}')
        a(f'v_mul_u32_u24 v{T+13}, 272, v{T+13}')
        a(f'v_and_b32 v{T+14}, 15, v{vLane}')
        a(f'v_lshl_add_u32 v{T+13}, v{T+14}, 4, v{T+13}')
        a(f'v_add_u32 v{T+13}, s{sT1}, v{T+13}')
        a(f'v_lshlrev_b32 v{T+15}, 4, v{vLane}')
        for X, O, rc, toff in (('A', OA, T+4, 0), ('B', OB, T+6, 8192)):
            for dt in range(4):
                for g in range(4):
                    r = O + 16 * dt + 4 * g
                    a(f'v_pk_mul_f32 {vr(r,2)}, {vr(r,2)}, {vr(rc,2)} op_sel_hi:[1,0]')
                    a(f'v_pk_mul_f32 {vr(r+2,2)}, {vr(r+2,2)}, {vr(rc,2)} op_sel_hi:[1,0]')
                    a(f'v_cvt_pk_bf16_f32 v{r}, v{r}, v{r+1}')
                    a(f'v_cvt_pk_bf16_f32 v{r+1}, v{r+2}, v{r+3}')
                    a(f'ds_write_b64 v{T+12}, {vr(r,2)} offset:{(4*dt+g)*16}')
            for i in range(8):
                a(f'ds_read_b128 {vr(O+4*i,4)}, v{T+13} offset:{i*4*272}')
            a(f's_lshl_b32 s{sT2}, s{sW}, 14')
            a(f's_add_u32 s{sT2}, s{sT2}, {toff}')
            a(f's_add_u32 s{sT3}, s{sT2}, 4096')
            for i in range(8):
                a(f's_waitcnt lgkmcnt({7-i})')
                so = sT2 if i < 4 else sT3
                off = f' offset:{(i&3)*1024}' if (i & 3) else ''
                a(f'buffer_store_dwordx4 {vr(O+4*i,4)}, v{T+15}, {sr(sO,4)}, s{so} offen{off}{st}')
        a('s_waitcnt lgkmcnt(0)')
        self.stamp(33)
        a('s_barrier')
        a(f'v_lshlrev_b32 v{T+11}, 2, v{T+8}')
        for p in range(4): a(f'ds_read_b32 v{T+p}, v{T+11} offset:{p*128}')
        a(f's_lshl_b32 s{sT1}, s{sW}, 3')
        a(f'v_lshrrev_b32 v{T+9}, 4, v{vLane}')
        a(f'v_add_u32 v{T+9}, s{sT1}, v{T+9}')
        a(f'v_lshlrev_b32 v{T+10}, 2, v{T+9}')
        for i in range(2):
            for p in range(4): a(f'ds_read_b32 v{128+4*i+p}, v{T+10} offset:{p*128 + i*16}')
        a(f'v_mul_u32_u24 v{T+12}, 528, v{T+9}')
        a(f'v_lshl_add_u32 v{T+12}, v{T+14}, 5, v{T+12}')
        for i in range(2):
            for p in range(4):
                for hh in range(2):
                    a(f'ds_read_b128 {vr(144+((i*4+p)*2+hh)*4,4)}, v{T+12} offset:{PB + p*PART + i*4*528 + hh*16}')
        a('s_waitcnt lgkmcnt(0)')
        a(f'v_add_f32 v{T}, v{T}, v{T+1}'); a(f'v_add_f32 v{T+2}, v{T+2}, v{T+3}'); a(f'v_add_f32 v{T}, v{T}, v{T+2}')
        a(f'v_cmp_ngt_f32 vcc, s{sThr}, v{T}')
        a(f's_cmp_lg_u32 s{sPass}, 0')
        a('s_cbranch_scc1 L_FIN')
        a('s_nop 1')
        a('s_cbranch_vccz L_FIN')
        a(f's_mov_b32 s{sPass}, 1')
        a(f's_mov_b32 s{sMJ}, 0')
        for X in 'ABC': a(f'v_mov_b32 v{MM[X]}, 0xff800000')
        a('s_branch L_FB_LOAD')
        a.label('L_FIN')
        for i in range(2):
            b = 128 + 4 * i
            a(f'v_add_f32 v{b}, v{b}, v{b+1}'); a(f'v_add_f32 v{b+2}, v{b+2}, v{b+3}'); a(f'v_add_f32 v{b}, v{b}, v{b+2}')
            a(f'v_rcp_f32 v{b}, v{b}')
        for i in range(2):
            base = 144 + i * 32
            for e in range(8):
                a(f'v_add_f32 v{base+e}, v{base+e}, v{base+8+e}')
                a(f'v_add_f32 v{base+16+e}, v{base+16+e}, v{base+24+e}')
                a(f'v_add_f32 v{base+e}, v{base+e}, v{base+16+e}')
            for e in range(8):
                a(f'v_mul_f32 v{base+e}, v{base+e}, v{128+4*i}')
            for e in range(4):
                a(f'v_cvt_pk_bf16_f32 v{base+e}, v{base+2*e}, v{base+2*e+1}')
        a(f's_lshl_b32 s{sT2}, s{sW}, 11')
        a(f's_add_u32 s{sT2}, s{sT2}, {8*8192}')
        for i in range(2):
            off = f' offset:{i*1024}' if i else ''
            a(f'buffer_store_dwordx4 {vr(144+i*32,4)}, v{T+15}, {sr(sO,4)}, s{sT2} offen{off}{st}')

    def text(self):
        hdr = f"""; GQA softmax attention forward, gfx950. Generated by gen/gen.py (hand-written generator).
; @launch grid=(256,1,1) block=(256,1,1) lds=163840
.amdgcn_target "amdgcn-amd-amdhsa--gfx950"
.text
.globl {NAME}
.p2align 8
.type {NAME},@function
{NAME}:
"""
        ftr = f"""
.section .rodata,"a"
.p2align 6
.amdhsa_kernel {NAME}
  .amdhsa_next_free_vgpr 512
  .amdhsa_next_free_sgpr 64
  .amdhsa_accum_offset 256
  .amdhsa_group_segment_fixed_size 0
  .amdhsa_kernarg_size 48
  .amdhsa_user_sgpr_count 2
  .amdhsa_user_sgpr_kernarg_segment_ptr 1
  .amdhsa_system_sgpr_workgroup_id_x 1
.end_amdhsa_kernel
"""
        return hdr + '\n'.join(l for l in self.L if l is not None) + ftr

def make(path, **opt):
    g = Gen(opt)
    g.build()
    g.L = [l for l in g.L if l is not None]
    errs = check(g.L, 'linear')
    for e in errs: print('HAZARD', e)
    open(path, 'w').write(g.text())
    return g

if __name__ == '__main__':
    import sys
    B = 'bench/'
    make('standalone__gqa_softmax__near_ridge.s')
    abl = {
      'a_full': {}, 'a_nodma': dict(no_dma=1), 'a_nobar': dict(no_bar=1, no_dma=1), 'a_nolds': dict(no_lds=1, no_dma=1, no_bar=1),
      'a_noexp': dict(no_exp=1, no_dma=1, no_bar=1), 'a_novalu': dict(no_exp=1, no_add=1, no_cvt=1, no_dma=1, no_bar=1),
      'a_bare': dict(no_exp=1, no_add=1, no_cvt=1, no_dma=1, no_bar=1, no_lds=1),
      'a_noadd': dict(no_add=1, no_dma=1, no_bar=1),
    }
    for k, v in abl.items(): make(B + k + '.s', stamps=True, **v)
```

```python
import sys, re; sys.path.insert(0,'gen')
import gen
def mk(path, **opt):
    gen.make(path, stamps='dbg', **opt)
    s = open(path).read()
    m = {'0':0,'1':1,'2':2,'3':3,'4':10,'5':11,'6':12,'7':4,'32':5,'33':6,'34':7,'35':8,'36':9}
    s = re.sub(r'v_writelane_b32 v239, s50, (\d+)', lambda x: f'v_writelane_b32 v239, s50, {m[x.group(1)]}', s)
    open(path,'w').write(s)
if __name__ == '__main__':
    mk('v_dbg_nt.s', ldflag='nt')
    mk('v_dbg_ntnt.s', ldflag='nt', stflag='nt')
    mk('v_dbg_sc1.s', ldflag='sc1')
    mk('v_dbg_stnt.s', stflag='nt')
```

```python
import sys, re; sys.path.insert(0,'gen')
import importlib
def probe(kind, a, b, K):
    L=[]; e=L.append
    e('.p2align 8'); e('.type probe_kernel,@function'); e('probe_kernel:')
    e('  s_cmp_ge_u32 s2, 1'); e('  s_cbranch_scc1 P_done')
    e('  s_load_dwordx2 s[4:5], s[0:1], 40')
    e('  v_and_b32 v0, 63, v0')
    e('  v_lshlrev_b32 v1, 8, v0')
    e('  v_mov_b32 v2, 0'); e('  v_mov_b32 v3, -1'); e('  v_mov_b32 v4, 0')
    e('  s_waitcnt lgkmcnt(0)')
    e('  s_mov_b32 s8, s4'); e('  s_and_b32 s9, s5, 0xffff'); e('  s_mov_b32 s10, 0x1000000'); e('  s_mov_b32 s11, 0x20000')
    for i in range(16):
        e(f'  s_mov_b32 s12, {i*64*256}')
        e(f'  buffer_load_dword v{8+i}, v1, s[8:11], s12 offen offset:{a*4}')
        e(f'  buffer_load_dword v{24+i}, v1, s[8:11], s12 offen offset:{b*4}')
    e('  s_waitcnt vmcnt(0)')
    for i in range(16):
        e(f'  v_sub_u32 v5, v{24+i}, v{8+i}')
        e(f'  v_add_u32 v2, v2, v5')
        e(f'  v_min_u32 v3, v3, v{8+i}')
        e(f'  v_max_u32 v4, v4, v{24+i}')
    e('  s_mov_b32 s13, 0'); e('  s_mov_b32 s14, -1'); e('  s_mov_b32 s15, 0')
    e('  s_nop 4')
    for l in range(64):
        e(f'  v_readlane_b32 s16, v2, {l}'); e(f'  v_readlane_b32 s17, v3, {l}'); e(f'  v_readlane_b32 s18, v4, {l}')
        e('  s_nop 3')
        e('  s_add_u32 s13, s13, s16'); e('  s_min_u32 s14, s14, s17'); e('  s_max_u32 s15, s15, s18')
    if kind == 'avg':
        e(f'  s_mul_i32 s13, s13, {K}'); e('  s_lshr_b32 s13, s13, 10')
    else:
        e('  s_sub_u32 s13, s15, s14'); e(f'  s_mul_i32 s13, s13, {K}')
    e('  s_min_u32 s13, s13, 30000')
    e('  s_memrealtime s[20:21]'); e('  s_waitcnt lgkmcnt(0)')
    e('  s_add_u32 s22, s20, s13')
    e('P_loop:')
    e('  s_memrealtime s[24:25]'); e('  s_waitcnt lgkmcnt(0)')
    e('  s_sub_u32 s26, s24, s22'); e('  s_cmp_lt_i32 s26, 0'); e('  s_cbranch_scc1 P_loop')
    e('P_done:'); e('  s_endpgm')
    kd = """
.amdhsa_kernel probe_kernel
  .amdhsa_next_free_vgpr 64
  .amdhsa_next_free_sgpr 64
  .amdhsa_accum_offset 64
  .amdhsa_group_segment_fixed_size 0
  .amdhsa_kernarg_size 48
  .amdhsa_user_sgpr_count 2
  .amdhsa_user_sgpr_kernarg_segment_ptr 1
  .amdhsa_system_sgpr_workgroup_id_x 1
.end_amdhsa_kernel
"""
    return '\n'.join(L) + '\n', kd

def mk(genmod, path, kind, a, b, K, **opt):
    genmod.make(path, stamps=True, allreal=True, **opt)
    s = open(path).read()
    m = re.search(r'; @launch (grid=\S+ block=\S+ lds=\d+)', s)
    s = s.replace(m.group(0), f'; @launch kernel=standalone__gqa_softmax__near_ridge_kernel {m.group(1)}\n; @launch kernel=probe_kernel grid=(1,1,1) block=(64,1,1) lds=0')
    code, kd = probe(kind, a, b, K)
    s = s.replace('\n.section .rodata,"a"', '\n' + code + '.section .rodata,"a"')
    s = s + kd
    open(path, 'w').write(s)

if __name__ == '__main__':
    import gen
    C = 'cdna_kernels/'
    o = dict(ldflag='nt')
    mk(gen, C+'p_0.s', 'avg', 0, 35, 0, **o)
    mk(gen, C+'p_span.s', 'span', 0, 35, 2, **o)
    mk(gen, C+'p_pro.s', 'avg', 0, 16, 2, **o)
    mk(gen, C+'p_loop.s', 'avg', 16, 32, 2, **o)
    mk(gen, C+'p_epi.s', 'avg', 32, 35, 2, **o)
    mk(gen, C+'p_skew.s', 'span', 0, 0, 4, **o)
```

```python
import sys, math, struct, re
from hazard import Ins, regs_of, check

NAME = 'standalone__gqa_softmax__near_ridge_kernel'
def f2u(x): return struct.unpack('<I', struct.pack('<f', x))[0]

OA, OB = 0, 64
SBUF = [128, 144]
NEG = {'A': 160, 'B': 176, 'C': 192}
LL = {'A': 208, 'B': 209, 'C': 210}
vK0 = [211, 212, 213]
vK1 = [214, 215, 216]
vV = [217, 218, 219]
vKc0, vKc1, vVc = 220, 221, 222
vDKa, vDKb, vDV = 223, 224, 225
vLane, vST = 226, 227
MM = {'A': 228, 'B': 229, 'C': 230}
T = 232
pQ = 64
pQf0, pQf1, pCf0, pCf1, pQs, pQc = 68, 69, 70, 71, 72, 73
pT = 74
pSC = 84
pSM = 96
pZ = 112
aOC, aQA, aQB, aQC, aKF, aVF = 0, 64, 96, 128, 160, 192
QQ = {'A': aQA, 'B': aQB, 'C': aQC}
OO = {'A': OA, 'B': OB}

sQ, sK, sV, sO = 12, 16, 20, 24
sW, sW2k, sSoff = 28, 29, 30
sC = 34
sMask, sThr, sPass, sT1, sT2, sT3, sMJ = 36, 37, 38, 39, 40, 41, 42
sW16k = 43
sCo = 44
sE1, sE2 = 48, 49

R = 10
QSTG = 88 * 1024
STG = 96 * 1024
PART, PB = 16896, 512

def vr(b, n): return f'v[{b}:{b+n-1}]'
def ar(b, n): return f'a[{b}:{b+n-1}]'
def sr(b, n): return f's[{b}:{b+n-1}]'


class X:
    __slots__ = ('t', 'm')
    def __init__(self, t, **m): self.t = t; self.m = m
    def __repr__(self): return self.t


def isx(i): return isinstance(i, X)
def tx(i): return i.t if isx(i) else i


class Gen:
    def __init__(self, opt):
        self.L = []
        self.opt = opt
        self.F = opt.get('F', 12)
    def __call__(self, s, **m): self.L.append(s if isx(s) else X(s, **m))
    def label(self, s): self.L.append(X(s + ':', label=True))
    def c(self, s): self.L.append(X('; ' + s, comment=True))
    def raw(self, s): self.L.append(X(s, comment=True, raw=True))
    def emit(self, l):
        for s in l: self(s)

    def stamp_l(self, idx, real=False):
        if not self.opt.get('stamps'): return []
        if self.opt.get('lite') and idx not in (0, 1, 4, 32, 35, 36, 37, 38) + tuple(self.opt.get('keep', ())) and not (5 <= idx <= 31 or 40 <= idx <= 47): return []
        return [X('s_memrealtime s[50:51]' if (real or self.opt.get('allreal')) else 's_memtime s[50:51]'),
                X('s_waitcnt lgkmcnt(0)'), X(f'v_writelane_b32 v{vST}, s50, {idx}')]
    def stamp(self, idx, real=False): self.emit(self.stamp_l(idx, real))

    def dma(self, vo, srd, soff, off, tag):
        fl = self.opt.get('ldflag', 'nt')
        o = f' offset:{off}' if off else ''
        fl = f' {fl}' if fl else ''
        return X(f'buffer_load_dwordx4 v{vo}, {sr(srd,4)}, {soff} offen{o}{fl} lds', dma=tag)

    def tile_dma(self, kind, j):
        slot = j % R
        lo = slot * 16384 + (8192 if kind == 'V' else 0)
        su = [X(f's_add_u32 m0, s{sW2k}, {lo}') if lo else X(f's_mov_b32 m0, s{sW2k}'), X(f's_mov_b32 s{sSoff}, {j * 8192}')]
        tag = (kind, j)
        if kind == 'V': d = [self.dma(vDV, sV, f's{sSoff}', 0, tag), self.dma(vDV, sV, f's{sSoff}', 1024, tag)]
        else: d = [self.dma(vDKa, sK, f's{sSoff}', 0, tag), self.dma(vDKb, sK, f's{sSoff}', 1024, tag)]
        return su, d

    def mfma_qk(self, tile, sb, t, c0):
        c = c0 if t == 0 else vr(sb, 16)
        return X(f'v_mfma_f32_32x32x16_bf16 {vr(sb,16)}, {ar(aKF+4*t,4)}, {ar(QQ[tile]+4*t,4)}, {c}')
    def mfma_pv(self, tile, sb, k, first=False):
        s, dt = k >> 2, k & 3
        o = ar(aOC + 16 * dt, 16) if tile == 'C' else vr(OO[tile] + 16 * dt, 16)
        c = '0' if (first and s == 0) else o
        return X(f'v_mfma_f32_32x32x16_bf16 {o}, {ar(aVF+4*k,4)}, {vr(sb+4*s,4)}, {c}')
    def exp(self, sb, r): return X(f'v_exp_f32 v{sb+r}, v{sb+r}')
    def add(self, tile, sb, r): return X(f'v_add_f32 v{LL[tile]}, v{LL[tile]}, v{sb+r}')
    def cvt(self, sb, k): return X(f'v_cvt_pk_bf16_f32 v{sb+k}, v{sb+2*k}, v{sb+2*k+1}')

    def kread(self, src, t):
        if src[0] == 'p':
            slot = src[1] % R
            reg = (vK0 if t % 2 == 0 else vK1)[slot >> 2]
            off = (slot & 3) * 16384 + (t >> 1) * 256
            tags = [('K', src[1])]
        else:
            reg = vKc0 if t % 2 == 0 else vKc1
            off = (t >> 1) * 256
            tags = [('K', 4 * src[1] + w) for w in range(4)]
        return X(f'ds_read_b128 {ar(aKF+4*t,4)}, v{reg}' + (f' offset:{off}' if off else ''), rd=tags)
    def vread(self, src, k, e):
        s, dt = k >> 2, k & 3
        o = 8192 + (4 * s + 2 * e) * 1024 + dt * 256
        if src[0] == 'p':
            slot = src[1] % R
            reg = vV[slot >> 2]; o += (slot & 3) * 16384
            tags = [('V', src[1])]
        else:
            reg = vVc
            tags = [('V', 4 * src[1] + w) for w in range(4)]
        return X(f'ds_read_b64_tr_b16 {ar(aVF+4*k+2*e,2)}, v{reg} offset:{o}', rd=tags)

    def maxtree(self, m, sb): return [X(f'v_max3_f32 v{m}, v{m}, v{sb+2*i}, v{sb+2*i+1}') for i in range(8)]
    def finish_max(self, tile, tmp):
        m, n = MM[tile], NEG[tile]
        out = [f'v_mov_b32 v{tmp}, v{m}', 's_nop 1', f'v_permlane32_swap_b32 v{m}, v{tmp}', 's_nop 1',
               f'v_max_f32 v{m}, v{m}, v{tmp}', f'v_sub_f32 v{n}, 0, v{m}']
        out += [f'v_mov_b32 v{n+r}, v{n}' for r in range(1, 16)]
        return [X(s) for s in out]
    def softmax1(self, tile, sb):
        e, cv = self.exp, self.cvt
        ad = lambda r: self.add(tile, sb, r)
        return [e(sb,0), e(sb,1), e(sb,2), ad(0), ad(1), cv(sb,0), e(sb,3), e(sb,4), ad(2), ad(3), cv(sb,1), e(sb,5), ad(4)]
    def softmax2(self, tile, sb):
        e, cv = self.exp, self.cvt
        ad = lambda r: self.add(tile, sb, r)
        return [ad(5), cv(sb,2), e(sb,6), e(sb,7), e(sb,8), ad(6), ad(7), cv(sb,3), e(sb,9), ad(8),
                e(sb,10), e(sb,11), ad(9), cv(sb,4), e(sb,12), e(sb,13), ad(10), ad(11), cv(sb,5),
                e(sb,14), e(sb,15), ad(12), ad(13), cv(sb,6), ad(14), ad(15), cv(sb,7)]

    def scale_chunk(self, va, off, tag):
        d, t = pSC, pSC + 4
        o = f' offset:{off}' if off else ''
        rd = [X(f'ds_read_b128 {vr(d,4)}, v{va}{o}', rd=[tag])]
        w = []
        for i in range(4): w.append(f'v_lshlrev_b32 v{t+2*i}, 16, v{d+i}')
        for i in range(4): w.append(f'v_and_b32 v{t+2*i+1}, s{sMask}, v{d+i}')
        for i in range(4): w.append(f'v_pk_mul_f32 {vr(t+2*i,2)}, {vr(t+2*i,2)}, {sr(sC,2)}')
        for i in range(4): w.append(f'v_cvt_pk_bf16_f32 v{d+i}, v{t+2*i}, v{t+2*i+1}')
        wr = [X(f'ds_write_b128 v{va}, {vr(d,4)}{o}', wr=tag)]
        return rd, [X(s) for s in w], wr

    def qfrag(self, tile, va0, va1, extra=0):
        tag = ('Q' + tile,)
        out = []
        for t in range(8):
            off = (t >> 1) * 256 + extra
            out.append(X(f'ds_read_b128 {ar(QQ[tile]+4*t,4)}, v{va0 if t % 2 == 0 else va1}' + (f' offset:{off}' if off else ''), rd=[tag]))
        return out

    def waitvm(self, tags): return X('WAITVM', vm=list(tags))
    def barrier(self): return X('s_barrier')

    def src_of(self, it): return ('c', it[1]) if it[0] == 'C' else ('p', it[1])

    def block(self, bi, cur, nxt, nn, prev_cur, dmas, extras, first_pv=False):
        o = self.opt
        cb, nb = SBUF[bi & 1], SBUF[(bi + 1) & 1]
        mem = [[] for _ in range(16)]
        val = [[] for _ in range(16)]
        tail = [[] for _ in range(16)]
        ct, nt = cur[0], nxt[0]
        for g in range(10): val[g].append(self.exp(cb, g + 6))
        for g in range(10, 16): val[g].append(self.exp(nb, g - 10))
        val[0].append(self.add(ct, cb, 5))
        for g in range(1, 11): val[g].append(self.add(ct, cb, g + 5))
        for g in range(11, 16): val[g].append(self.add(nt, nb, g - 11))
        for i, k in enumerate(range(2, 8)): val[2 * i].append(self.cvt(cb, k))
        val[12].append(self.cvt(nb, 0)); val[14].append(self.cvt(nb, 1))
        scur, snxt = self.src_of(cur), self.src_of(nxt)
        if prev_cur is None or self.src_of(prev_cur) != scur:
            if prev_cur is not None:
                for k in range(4, 8):
                    for e in range(2): mem[2 * (k - 4) + e].append(self.vread(scur, k, e))
            if ct == 'C': tail[8].append(X(f'v_add_u32 v{vVc}, s{sCo + cur[1] + 1}, v{pV_base}') if cur[1] < 3 else None)
        if nn is not None and self.src_of(nn) != snxt:
            for t in range(8): mem[8 + t].append(self.kread(self.src_of(nn), t))
        if snxt != scur:
            for k in range(4):
                for e in range(2): mem[8 + 2 * k + e].append(self.vread(snxt, k, e))
        if nn is not None and nn[0] == 'C' and False:
            pass
        for (g0, kind, j) in dmas:
            su, d = self.tile_dma(kind, j)
            tail[g0] += su
            mem[g0 + 1].append(d[0]); mem[g0 + 3].append(d[1])
            self.issued[(kind, j)] = bi
        q = o.get('xq', 2)
        ex = list(extras)
        gi = o.get('xg0', 0) if False else 0
        hold = getattr(self, 'xhold', 0)
        defer = []
        nd = 0
        while ex and ex[0].m.get('deferred'):
            mem[0].append(ex.pop(0))
        for g in range(16):
            for it in defer: mem[g].append(it)
            defer = []
            n = 0; sawv = False
            if hold > 0:
                hold -= 1; continue
            while ex and n < q:
                it = ex[0]
                ming = it.m.get('ming', 0)
                if g < ming: break
                t = it.t
                ismem = t.startswith('ds_') or t.startswith('buffer_')
                if ismem:
                    if sawv or defer:
                        if t.startswith('ds_write'):
                            defer.append(ex.pop(0)); continue
                        break
                    mem[g].append(it)
                    ex.pop(0)
                    if it.m.get('space'): hold = it.m['space']
                    if it.m.get('solo'): break
                    if not t.startswith('ds_write'): n += 1
                    continue
                val[g].append(it); sawv = True
                ex.pop(0)
                if t.startswith('s_'): continue
                n += 1
                if it.m.get('space'): hold = it.m['space']
                if it.m.get('solo'): break
        for it in defer: it.m['deferred'] = True
        left = defer + ex
        self.xhold = hold
        need = []
        firstg = 16
        for g in range(16):
            for x in mem[g]:
                for tg in x.m.get('rd', []):
                    if tg[0] in 'KV' and tg not in self.pub and tg not in need:
                        need.append(tg); firstg = min(firstg, g)
        if need or o.get('allbar'):
            bg = min(o.get('bargap', 3), firstg - 1)
            assert bg >= 0, (bi, need)
            cover = list(need)
            for tg in need:
                if tg[0] == 'K':
                    v = ('V', tg[1])
                    if v in self.issued and v not in self.pub and v not in cover and self.issued[v] <= bi - o.get('vlead', 3): cover.append(v)
            for tg in cover:
                assert tg in self.issued, ('not issued', bi, tg)
                self.pub.add(tg)
            tail[bg] += [self.waitvm(cover), self.barrier()]
        out = []
        for g in range(16):
            out.append(self.mfma_qk(nt, nb, g, vr(NEG[nt], 16)) if g < 8 else self.mfma_pv(ct, cb, g - 8, first_pv))
            out += mem[g] + val[g] + [x for x in tail[g] if x is not None]
        return out, left

    def epi_pre(self, tile, rc, tmp):
        l = LL[tile]
        return [X(f'v_mov_b32 v{tmp}, v{l}', solo=True), X(f'v_permlane32_swap_b32 v{l}, v{tmp}', solo=True),
                X(f'v_add_f32 v{l}, v{l}, v{tmp}'),
                X(f'v_cmp_gt_f32 vcc, s{sThr}, v{l}', solo=True), X(f'v_rcp_f32 v{rc}, v{l}', solo=True),
                X(f'v_cndmask_b32 v{LL["C"]}, v{eINF}, v{LL["C"]}, vcc')]
    def epi_tile(self, tile, rc):
        O = OO[tile]
        st = self.opt.get('stflag', 'nt'); st = f' {st}' if st else ''
        cw = []
        for dt in range(4):
            for g in range(4):
                r = O + 16 * dt + 4 * g
                c = 4 * dt + g
                for i in range(4): cw.append(X(f'v_mul_f32 v{r+i}, v{r+i}, v{rc}'))
                cw.append(X(f'v_cvt_pk_bf16_f32 v{r}, v{r}, v{r+1}'))
                cw.append(X(f'v_cvt_pk_bf16_f32 v{r+1}, v{r+2}, v{r+3}'))
                off = ' offset:128' if c >> 3 else ''
                cw.append(X(f'ds_write_b64 v{eWA + (c & 7)}, {vr(r,2)}{off}'))
        rd = [X(f'ds_read_b128 {vr(O + 4*i, 4)}, v{eSR + (i & 1)}' + (f' offset:{i*1024}' if i else '')) for i in range(8)]
        toff = 8192 if tile == 'B' else 0
        sts = []
        for i in range(8):
            if i % 4 == 0:
                k = toff + (i >> 2) * 4096
                sts.append(X(f's_add_u32 s{sE1}, s{sW16k}, {k}') if k else X(f's_mov_b32 s{sE1}, s{sW16k}'))
            off = f' offset:{(i & 3) * 1024}' if i & 3 else ''
            sts.append(X(f'buffer_store_dwordx4 {vr(O + 4*i, 4)}, v{eSO}, {sr(sO,4)}, s{sE1} offen{off}{st}', st=True))
        return cw, rd, sts
    def epi_addr(self):
        t = eT
        out = [X(f'v_and_b32 v{t}, 31, v{vLane}'), X(f'v_lshrrev_b32 v{t+1}, 5, v{vLane}'),
               X(f's_lshl_b32 s{sE1}, s{sW}, 13'), X(f's_add_u32 s{sE1}, s{sE1}, {STG}'),
               X(f'v_lshlrev_b32 v{eWA}, 8, v{t}'), X(f'v_lshl_add_u32 v{eWA}, v{t+1}, 3, v{eWA}'),
               X(f'v_and_b32 v{t}, 7, v{vLane}'), X(f'v_lshl_add_u32 v{eWA}, v{t}, 4, v{eWA}'),
               X(f'v_add_u32 v{eWA}, s{sE1}, v{eWA}')]
        out += [X(f'v_xor_b32 v{eWA + k}, {k << 4}, v{eWA}') for k in range(1, 8)]
        out += [X(f'v_lshrrev_b32 v{t+1}, 4, v{vLane}'), X(f'v_xor_b32 v{t}, v{t}, v{t+1}'),
                X(f'v_lshlrev_b32 v{eSR}, 8, v{t+1}'), X(f'v_lshl_add_u32 v{eSR}, v{t}, 4, v{eSR}'),
                X(f'v_bfe_u32 v{t}, v{vLane}, 3, 1'), X(f'v_lshl_add_u32 v{eSR}, v{t}, 7, v{eSR}'),
                X(f'v_add_u32 v{eSR}, s{sE1}, v{eSR}'), X(f'v_xor_b32 v{eSR + 1}, 64, v{eSR}'),
                X(f'v_lshlrev_b32 v{eSO}, 4, v{vLane}'),
                X(f'v_mov_b32 v{eINF}, 0x7f800000')]
        return out

    def mix(self, mf, fl):
        n = len(mf)
        k = 0
        for i, m in enumerate(mf):
            self(m)
            upto = (len(fl) * (i + 1) + n - 1) // n
            while k < upto:
                self(fl[k]); k += 1

    def build(self):
        o = self.opt; a = self; F = self.F
        self.pub = set(); self.issued = {}
        a('s_cmp_ge_u32 s2, 256')
        a('s_cbranch_scc1 L_end')
        a('s_load_dwordx4 s[4:7], s[0:1], 0')
        a('s_load_dwordx4 s[8:11], s[0:1], 16')
        if o.get('stamps'):
            a(f's_load_dwordx2 s[54:55], s[0:1], {32 if o.get("stamps") == "dbg" else 40}')
            a(f'v_mov_b32 v{vST}, 0')
            self.stamp(0); self.stamp(1, real=True)
        a(f'v_and_b32 v{vLane}, 63, v0')
        a(f'v_lshrrev_b32 v{T}, 6, v0')
        for t in 'ABC': a(f'v_mov_b32 v{MM[t]}, 0xff800000')
        a(f'v_readfirstlane_b32 s{sW}, v{T}')
        a(f's_mov_b32 s{sPass}, 0')
        a.label('L_RESTART')
        a(f'v_bfe_u32 v{pT}, v{vLane}, 2, 2')
        a(f'v_lshlrev_b32 v{pT}, 8, v{pT}')
        a(f'v_lshrrev_b32 v{pT+1}, 4, v{vLane}')
        a(f'v_lshl_add_u32 v{pT}, v{pT+1}, 6, v{pT}')
        a(f'v_and_b32 v{pT+1}, 3, v{vLane}')
        a(f's_lshl_b32 s{sW2k}, s{sW}, 11')
        a(f's_lshl_b32 s{sT1}, s{sW}, 1')
        a(f's_and_b32 s{sT1}, s{sT1}, 3')
        a(f's_or_b32 s{sT2}, s{sT1}, 1')
        a(f's_lshl_b32 s{sW16k}, s{sW}, 14')
        a(f'v_xor_b32 v{pT+2}, s{sT1}, v{pT+1}')
        a(f'v_lshl_add_u32 v{vDKa}, v{pT+2}, 4, v{pT}')
        a(f'v_add_u32 v{vDKa}, s{sW2k}, v{vDKa}')
        a(f'v_xor_b32 v{pT+2}, s{sT2}, v{pT+1}')
        a(f'v_lshl_add_u32 v{vDKb}, v{pT+2}, 4, v{pT}')
        a(f'v_add_u32 v{vDKb}, s{sW2k}, v{vDKb}')
        for x in range(4):
            a(f'v_xor_b32 v{pT+2}, {x}, v{pT+1}')
            a(f'v_lshl_add_u32 v{pQ+x}, v{pT+2}, 4, v{pT}')
        a(f'v_add_u32 v{vDV}, s{sW2k}, v{pQ}')
        a('s_waitcnt lgkmcnt(0)')
        a(f's_lshl_b32 s{sT2}, s2, 17')
        a(f's_add_u32 s{sK}, s6, s{sT2}'); a(f's_addc_u32 s{sK+1}, s7, 0'); a(f's_mov_b32 s{sK+2}, 131072'); a(f's_mov_b32 s{sK+3}, 0x20000')
        D = []
        def tile(kind, j):
            su, d = self.tile_dma(kind, j)
            D.append(su + [d[0]]); D.append([d[1]])
            self.issued[(kind, j)] = -1
        def qtile(t):
            base = 8192 if t == 'B' else 0
            for b in range(8):
                l = []
                if b % 4 == 0:
                    l += [X(f's_add_u32 m0, s{sW16k}, {QSTG + base + (b >> 2) * 4096}'),
                          X(f's_add_u32 s{sT2}, s{sW16k}, {base + (b >> 2) * 4096}') if (base or b) else X(f's_mov_b32 s{sT2}, s{sW16k}')]
                l.append(self.dma(pQ + (b & 3), sQ, f's{sT2}', (b & 3) * 1024, ('Q' + t, b)))
                D.append(l)
        def qctile():
            D.append([X(f's_add_u32 m0, s{sW2k}, {QSTG + 65536}'), X(f's_mov_b32 s{sT2}, 65536'), self.dma(vDKa, sQ, f's{sT2}', 0, ('QC', 0))])
            D.append([self.dma(vDKb, sQ, f's{sT2}', 1024, ('QC', 1))])
        tile('K', 0); qtile('A'); qctile(); qtile('B'); tile('V', 0)
        tile('K', 1); tile('V', 1); tile('K', 2); tile('V', 2); tile('K', 3)
        for s in D[0] + D[1]: a(s)
        a(f's_mul_i32 s{sT3}, s2, 73728')
        a(f's_add_u32 s{sQ}, s4, s{sT3}'); a(f's_addc_u32 s{sQ+1}, s5, 0'); a(f's_mov_b32 s{sQ+2}, 73728'); a(f's_mov_b32 s{sQ+3}, 0x20000')
        for i in range(2, 12):
            for s in D[i]: a(s)
        self.stamp(2)
        a(f's_lshl_b32 s{sT2+0}, s2, 17') if False else None
        a(f's_lshl_b32 s{sT1}, s2, 17')
        a(f's_add_u32 s{sV}, s8, s{sT1}'); a(f's_addc_u32 s{sV+1}, s9, 0'); a(f's_mov_b32 s{sV+2}, 131072'); a(f's_mov_b32 s{sV+3}, 0x20000')
        a(f's_add_u32 s{sO}, s10, s{sT3}'); a(f's_addc_u32 s{sO+1}, s11, 0'); a(f's_mov_b32 s{sO+2}, 73728'); a(f's_mov_b32 s{sO+3}, 0x20000')
        a(f'v_and_b32 v{pT}, 31, v{vLane}')
        a(f'v_lshrrev_b32 v{pT+1}, 5, v{vLane}')
        a(f'v_lshrrev_b32 v{pT+2}, 2, v{pT}')
        k0 = vK0[0]
        a(f'v_lshlrev_b32 v{k0}, 10, v{pT+2}')
        a(f'v_and_b32 v{pT+3}, 3, v{pT}')
        a(f'v_lshl_add_u32 v{k0}, v{pT+3}, 6, v{k0}')
        a(f'v_and_b32 v{pT+2}, 3, v{pT+2}')
        a(f'v_xor_b32 v{pT+2}, v{pT+1}, v{pT+2}')
        a(f'v_lshl_add_u32 v{k0}, v{pT+2}, 4, v{k0}')
        a(f'v_xor_b32 v{vK1[0]}, 32, v{k0}')
        v0 = vV[0]
        a(f'v_lshlrev_b32 v{v0}, 10, v{pT+1}')
        a(f'v_bfe_u32 v{pT+2}, v{vLane}, 2, 2')
        a(f'v_lshl_add_u32 v{v0}, v{pT+2}, 6, v{v0}')
        a(f'v_bfe_u32 v{pT+2}, v{vLane}, 4, 1')
        a(f'v_lshl_add_u32 v{v0}, v{pT+2}, 5, v{v0}')
        a(f'v_and_b32 v{pT+2}, 3, v{vLane}')
        a(f'v_lshl_add_u32 v{v0}, v{pT+2}, 3, v{v0}')
        for wdw in (1, 2):
            a(f'v_add_u32 v{vK0[wdw]}, {wdw * 65536}, v{k0}')
            a(f'v_add_u32 v{vK1[wdw]}, {wdw * 65536}, v{vK1[0]}')
            a(f'v_add_u32 v{vV[wdw]}, {wdw * 65536}, v{v0}')
        cval = f2u(math.log2(math.e) / math.sqrt(128.0))
        a(f's_mov_b32 s{sC}, {cval:#x}'); a(f's_mov_b32 s{sC+1}, {cval:#x}')
        a(f's_mov_b32 s{sMask}, 0xffff0000')
        a(f's_mov_b32 s{sThr}, {f2u(2.0**32):#x}')
        for i in range(4):
            lo = (4 * i) % R
            a(f's_add_u32 s{sCo+i}, s{sW16k}, {lo * 16384}')
            if lo + 3 >= R:
                a(f's_cmp_ge_u32 s{sCo+i}, {R * 16384}')
                a(f's_cselect_b32 s{sT1}, {R * 16384}, 0')
                a(f's_sub_u32 s{sCo+i}, s{sCo+i}, s{sT1}')
        a(f'v_add_u32 v{vKc0}, s{sCo}, v{k0}')
        a(f'v_add_u32 v{vKc1}, s{sCo}, v{vK1[0]}')
        a(f'v_add_u32 v{vVc}, s{sCo}, v{v0}')
        a(f'v_lshlrev_b32 v{pT}, 4, v{vLane}')
        a(f's_add_u32 s{sT3}, s{sW16k}, {QSTG}')
        a(f'v_add_u32 v{pQs}, s{sT3}, v{pT}')
        a(f'v_add_u32 v{pQf0}, s{sT3}, v{k0}')
        a(f'v_xor_b32 v{pQf1}, 32, v{pQf0}')
        a(f's_add_u32 s{sT3}, s{sW2k}, {QSTG + 65536}')
        a(f'v_add_u32 v{pQc}, s{sT3}, v{pT}')
        a(f'v_add_u32 v{pCf0}, {QSTG + 65536}, v{k0}')
        a(f'v_xor_b32 v{pCf1}, 32, v{pCf0}')
        for t in 'ABC': a(f'v_mov_b32 v{LL[t]}, 0')
        SA0, SB0 = SBUF[0], SBUF[1]
        chunks = [('QA', c, pQs, c * 1024) for c in range(8)] + [('QC', c, pQc, c * 1024) for c in range(2)] + \
                 [('QB', c, pQs, 8192 + c * 1024) for c in range(8)]
        fill = {i: [] for i in range(18)}
        fill[10] = [self.kread(('p', 0), t) for t in range(8)] + self.qfrag('A', pQf0, pQf1)
        fill[11] = self.qfrag('C', pCf0, pCf1) + [self.mfma_qk('A', SA0, t, '0') for t in range(8)]
        fill[12] = [self.mfma_qk('C', pSM, t, '0') for t in range(4)]
        fill[13] = [self.mfma_qk('C', pSM, t, '0') for t in range(4, 8)] + self.maxtree(MM['A'], SA0)
        fill[14] = self.finish_max('A', pT) + self.maxtree(MM['C'], pSM)
        fill[15] = [X(f'v_add_f32 v{SA0+r}, v{SA0+r}, v{NEG["A"]}') for r in range(16)] + self.finish_max('C', pT + 1)
        fill[16] = self.softmax1('A', SA0) + self.softmax2('A', SA0)[:10]
        fill[17] = self.softmax2('A', SA0)[10:]
        if o.get('touch'): a(X('TOUCH_ENTRY', comment=True, touch_entry=True))
        nD = 12
        for _ in range(2):
            a('s_waitcnt vmcnt(11)')
            for s in D[nD]: a(s)
            nD += 1
        for it, (tg, c, va, off) in enumerate(chunks):
            rd, wk, wr = self.scale_chunk(va, off, (tg,))
            rd[0].m['rdq'] = (tg, c)
            a.c(f'scale {tg} {c}')
            a('s_waitcnt vmcnt(11)')
            if nD < len(D):
                for s in D[nD]: a(s)
                nD += 1
            for s in rd: a(s)
            f_lds = [s for s in fill[it] if s.t.startswith('ds_')]
            mf = [s for s in fill[it] if s.t.startswith('v_mfma')]
            vf = [s for s in fill[it] if not s.t.startswith('ds_') and not s.t.startswith('v_mfma')]
            for s in f_lds: a(s)
            step = max(1, len(wk) // max(1, len(mf))) if mf else 0
            k = 0
            for idx, s in enumerate(wk):
                if mf and idx % step == 0 and k < len(mf):
                    a(mf[k]); k += 1
                a(s)
            while k < len(mf):
                a(mf[k]); k += 1
            for s in wr: a(s)
            for s in vf: a(s)
            if it == 9:
                a('s_waitcnt lgkmcnt(0)')
                a(self.waitvm([('K', 0)]))
                a(self.barrier()); self.pub.add(('K', 0))
        assert nD == len(D)
        self.stamp(3)
        for s in self.qfrag('B', pQf0, pQf1, 8192): a(s)
        for t in range(8): a(self.mfma_qk('B', SB0, t, '0'))
        a(self.waitvm([('V', 0)])); a(self.barrier()); self.pub.add(('V', 0))
        vr0 = [self.vread(('p', 0), k, e) for k in range(8) for e in range(2)]
        for s in vr0[:8]: a(s)
        for s in self.maxtree(MM['B'], SB0): a(s)
        for s in vr0[8:]: a(s)
        fm = self.finish_max('B', pT)
        pv = [self.mfma_pv('A', SA0, k, True) for k in range(8)]
        self.mix(pv[:4], fm)
        a(self.waitvm([('K', 1)])); a(self.barrier()); self.pub.add(('K', 1))
        for t in range(8): a(self.kread(('p', 1), t))
        self.mix(pv[4:], [X(f'v_add_f32 v{SB0+r}, v{SB0+r}, v{NEG["B"]}') for r in range(16)])
        for s in self.softmax1('B', SB0): a(s)
        a.label('L_GO')
        self.stamp(4); self.stamp(37, real=True)
        items = []
        for j in range(F):
            items += [('A', j), ('B', j)]
            if j == 3: items.append(('C', 0))
            if j == 7: items.append(('C', 1))
        items += [('A', j) for j in range(F, 16)] + [('B', j) for j in range(F, 16)] + [('C', 2), ('C', 3)]
        self.items = items
        nblk = len(items) - 3
        plan = o.get('plan') or self.default_plan(items)
        iA15 = items.index(('A', 15))
        stream = []
        xsched = {}
        bA = iA15 - 1
        rcA, rcB = eRC, eRC + 1
        ea = self.epi_addr()
        ea[0].m['ming'] = 2
        xsched.setdefault(bA, []).extend(ea)
        pre = self.epi_pre('A', rcA, eT)
        pre[0].m['ming'] = 11
        xsched.setdefault(bA, []).extend(pre)
        cw, rd, sts = self.epi_tile('A', rcA)
        for x in sts:
            if x.m.get('st'): x.m['solo'] = True; x.m['space'] = o.get('stspace', 3)
        st = cw + rd + sts
        st[0].m['ming'] = 2
        xsched.setdefault(bA + 1, []).extend(st)
        preB = self.epi_pre('B', rcB, eT)
        preB[0].m['ming'] = 11
        for n in range(nblk):
            cur, nxt = items[n + 1], items[n + 2]
            nn = items[n + 3]
            prev = items[n]
            ext = stream + xsched.get(n, [])
            if nn[0] == 'C' and nn[1] > 0:
                ext = [X(f'v_add_u32 v{vKc0}, s{sCo+nn[1]}, v{vK0[0]}'), X(f'v_add_u32 v{vKc1}, s{sCo+nn[1]}, v{vK1[0]}')] + ext
            if n == nblk - 1:
                ext = ext + preB
            a.c(f'block {n}: Q{nxt[0]}{nxt[1]} P{cur[0]}{cur[1]}')
            if o.get('stamps') and (not o.get('lite') or n in o.get('sblk', ())): self.stamp(5 + n if n < 27 else 40 + n - 27)
            first_pv = cur in (('B', 0), ('C', 0))
            out, stream = self.block(n + 1, cur, nxt, nn, prev if n else cur, plan.get(n, []), ext, first_pv)
            self.emit(out)
        self.tail(nblk + 1, stream, rcB)
        a.label('L_end')
        a('s_endpgm')
        self.main_end = len(self.L)
        self.fallback()

    def default_plan(self, items):
        o = self.opt
        when = o.get('dma_blocks', {3: 0, 4: 1, 5: 2, 6: 4, 7: 6, 8: 8, 9: 9, 10: 11, 11: 13, 12: 14, 13: 16, 14: 18, 15: 19})
        plan = {}
        g = o.get('dma_gap', 0)
        for j, b in when.items():
            for i, kind in enumerate('KV'):
                if (kind, j) in self.issued: continue
                plan.setdefault(b, []).append((g + 4 * i, kind, j))
        return plan

    def tail(self, bi, left, rcB):
        a = self; o = self.opt
        c2, c3 = SBUF[bi & 1], SBUF[(bi + 1) & 1]
        st = o.get('stflag', 'nt'); st = f' {st}' if st else ''
        self.stamp(32); self.stamp(38, real=True)
        for s in left: a(s)
        vhi2 = [self.vread(('c', 2), k, e) for k in range(4, 8) for e in range(2)]
        cw, rd, sts = self.epi_tile('B', rcB)
        q3 = [self.mfma_qk('C', c3, t, vr(NEG['C'], 16)) for t in range(8)]
        for s in vhi2: a(s)
        self.mix(q3, cw + rd)
        a(f'v_add_u32 v{vVc}, s{sCo+3}, v{vV[0]}')
        k = [0]
        def store():
            while k[0] < len(sts):
                x = sts[k[0]]; a(x); k[0] += 1
                if x.m.get('st'): break
        sm2 = self.softmax2('C', c2)
        for i, s in enumerate(sm2):
            a(s)
            if i in (8, 17, 26): store()
        pv2 = [self.mfma_pv('C', c2, kk) for kk in range(8)]
        v3 = [self.vread(('c', 3), kk, e) for kk in range(8) for e in range(2)]
        sm3 = self.softmax1('C', c3) + self.softmax2('C', c3)
        pv3 = [self.mfma_pv('C', c3, kk) for kk in range(8)]
        n = len(sm3); kk = 0
        for i, m in enumerate(pv2):
            a(m)
            a(v3[2 * i]); a(v3[2 * i + 1])
            upto = (n * (i + 1) + 7) // 8
            while kk < upto:
                a(sm3[kk]); kk += 1
            if i in (1, 3, 5): store()
        for m in pv3[:4]: a(m)
        store(); store()
        assert k[0] == len(sts)
        lC = LL['C']; t = eT
        a(f'v_mov_b32 v{t}, v{lC}'); a('s_nop 1'); a(f'v_permlane32_swap_b32 v{lC}, v{t}')
        for m in pv3[4:]: a(m)
        a(f'v_add_f32 v{lC}, v{lC}, v{t}')
        a(f'v_and_b32 v{t+2}, 31, v{vLane}')
        a(f'v_lshrrev_b32 v{t+3}, 5, v{vLane}')
        a(f's_mul_i32 s{sT1}, s{sW}, {PART}')
        a(f's_add_u32 s{sT1}, s{sT1}, {PB}')
        a(f'v_mul_u32_u24 v{t+4}, 528, v{t+2}')
        a(f'v_lshl_add_u32 v{t+4}, v{t+3}, 4, v{t+4}')
        a(f'v_add_u32 v{t+4}, s{sT1}, v{t+4}')
        a(f's_lshl_b32 s{sT1}, s{sW}, 7')
        a(f'v_lshlrev_b32 v{t+5}, 2, v{t+2}')
        a(f'v_add_u32 v{t+6}, s{sT1}, v{t+5}')
        a('s_waitcnt lgkmcnt(0)')
        a(self.barrier())
        a(f'ds_write_b32 v{t+6}, v{lC}')
        for dt in range(4):
            for g in range(4):
                a(f'ds_write_b128 v{t+4}, {ar(aOC+16*dt+4*g,4)} offset:{(8*dt+2*g)*16}')
        a(f's_lshl_b32 s{sT1}, s{sW}, 3')
        a(f'v_lshrrev_b32 v{t+7}, 4, v{vLane}')
        a(f'v_add_u32 v{t+7}, s{sT1}, v{t+7}')
        a(f'v_lshlrev_b32 v{t+8}, 2, v{t+7}')
        a(f'v_and_b32 v{t+9}, 15, v{vLane}')
        a(f'v_mul_u32_u24 v{t+10}, 528, v{t+7}')
        a(f'v_lshl_add_u32 v{t+10}, v{t+9}, 5, v{t+10}')
        a(f'v_lshlrev_b32 v{t+11}, 4, v{vLane}')
        a('s_waitcnt lgkmcnt(0)')
        self.stamp(33)
        a(self.barrier())
        L0 = 128
        for p in range(4): a(f'ds_read_b32 v{L0+p}, v{t+5} offset:{p*128}')
        for i in range(2):
            for p in range(4): a(f'ds_read_b32 v{L0+4+4*i+p}, v{t+8} offset:{p*128 + i*16}')
        PR = 144
        for i in range(2):
            for p in range(4):
                for hh in range(2):
                    a(f'ds_read_b128 {vr(PR+((i*4+p)*2+hh)*4,4)}, v{t+10} offset:{PB + p*PART + i*4*528 + hh*16}')
        a(f'v_add_f32 v{L0}, v{L0}, v{L0+1}'); a(f'v_add_f32 v{L0+2}, v{L0+2}, v{L0+3}'); a(f'v_add_f32 v{L0}, v{L0}, v{L0+2}')
        a(f'v_cmp_ngt_f32 vcc, s{sThr}, v{L0}')
        a(f's_cmp_lg_u32 s{sPass}, 0')
        a('s_cbranch_scc1 L_FIN')
        a('s_nop 1')
        if not o.get('no_fb'): a('s_cbranch_vccnz L_FB')
        a.label('L_FIN')
        for i in range(2):
            b = L0 + 4 + 4 * i
            a(f'v_add_f32 v{b}, v{b}, v{b+1}'); a(f'v_add_f32 v{b+2}, v{b+2}, v{b+3}'); a(f'v_add_f32 v{b}, v{b}, v{b+2}')
            a(f'v_rcp_f32 v{b}, v{b}')
        for i in range(2):
            base = PR + i * 32
            for e in range(8): a(f'v_add_f32 v{base+e}, v{base+e}, v{base+8+e}')
            for e in range(8): a(f'v_add_f32 v{base+16+e}, v{base+16+e}, v{base+24+e}')
            for e in range(8): a(f'v_add_f32 v{base+e}, v{base+e}, v{base+16+e}')
            for e in range(8): a(f'v_mul_f32 v{base+e}, v{base+e}, v{L0+4+4*i}')
            for e in range(4): a(f'v_cvt_pk_bf16_f32 v{base+e}, v{base+2*e}, v{base+2*e+1}')
        a(f's_lshl_b32 s{sT2}, s{sW}, 11')
        a(f's_add_u32 s{sT2}, s{sT2}, {8*8192}')
        for i in range(2):
            off = f' offset:{i*1024}' if i else ''
            a(f'buffer_store_dwordx4 {vr(PR+i*32,4)}, v{t+11}, {sr(sO,4)}, s{sT2} offen{off}{st}', st=True)
        if o.get('stamps'):
            self.stamp(34)
            a('s_waitcnt vmcnt(0)')
            self.stamp(35); self.stamp(36, real=True)
            a('s_mov_b32 s56, s54'); a('s_and_b32 s57, s55, 0xffff'); a(f's_mov_b32 s58, {256 if o.get("stamps") == "dbg" else 0x1000000}'); a('s_mov_b32 s59, 0x20000')
            a(f's_lshl_b32 s60, s2, 2'); a(f's_add_u32 s60, s60, s{sW}'); a('s_lshl_b32 s60, s60, 8')
            a(f'v_lshlrev_b32 v{t}, 2, v{vLane}')
            a(f'buffer_store_dword v{vST}, v{t}, s[56:59], s60 offen')

    def fallback(self):
        a = self
        a.label('L_FB')
        a(f's_mov_b32 s{sPass}, 1')
        a(f's_mov_b32 s{sMJ}, 0')
        for t in 'ABC': a(f'v_mov_b32 v{MM[t]}, 0xff800000')
        a('s_waitcnt vmcnt(0) lgkmcnt(0)')
        a.label('L_FB_LOAD')
        a('s_barrier')
        a(f's_mov_b32 m0, s{sW2k}')
        a(f's_lshl_b32 s{sT1}, s{sMJ}, 13')
        a(X(self.dma(vDKa, sK, f's{sT1}', 0, None).t)); a(X(self.dma(vDKb, sK, f's{sT1}', 1024, None).t))
        a('s_waitcnt vmcnt(0)')
        a('s_barrier')
        for t in range(8): a(X(self.kread(('p', 0), t).t))
        a('s_waitcnt lgkmcnt(0)')
        for t in 'ABC':
            for k in range(8): a(self.mfma_qk(t, SBUF[0], k, '0'))
            a('s_nop 7'); a('s_nop 7')
            for s in self.maxtree(MM[t], SBUF[0]): a(s)
            a('s_nop 1')
        a(f's_add_u32 s{sMJ}, s{sMJ}, 1')
        a(f's_cmp_lt_u32 s{sMJ}, 16')
        a('s_cbranch_scc1 L_FB_LOAD')
        a('s_barrier')
        a('s_branch L_RESTART')

    def passes(self):
        o = self.opt
        main, rest = self.L[:self.main_end], self.L[self.main_end:]
        main = [x for x in main if x is not None]
        main = self.lgkm_pass(main)
        main = self.vm_pass(main)
        main = self.nop_pass(main)
        self.proto_check(main)
        self.L = main + rest

    def lgkm_pass(self, L):
        safe = self.opt.get('safe_gap', 5)
        out = []; pend = []; done = 0; mf = 0
        for x in L:
            t = x.t
            if x.m.get('label') or x.m.get('comment') or t == 'WAITVM':
                out.append(x); continue
            m = re.search(r'lgkmcnt\((\d+)\)', t)
            if t.startswith('s_waitcnt') and m:
                done = max(done, len(pend) - int(m.group(1)))
                out.append(x); continue
            ins = Ins(t)
            rd = set(ins.r); wr = set(ins.w)
            chk = rd if ins.is_ds else (rd | wr)
            need = -1
            for k in range(done, len(pend)):
                if pend[k][0] & chk: need = k
            if need >= 0:
                k2 = need
                while k2 + 1 < len(pend) and mf - pend[k2 + 1][1] >= safe: k2 += 1
                n = min(len(pend) - 1 - k2, 15)
                out.append(X(f's_waitcnt lgkmcnt({n})', auto=True))
                done = len(pend) - n
            out.append(x)
            if ins.is_ds: pend.append((set(ins.w), mf))
            if ins.is_mfma: mf += 1
        return out

    def vm_pass(self, L):
        out = []; vm = []; done = 0
        for x in L:
            if x.t == 'WAITVM':
                idx = -1
                for tg in x.m['vm']:
                    ks = [k for k, g in enumerate(vm) if g == tg]
                    assert ks, ('WAITVM on unissued', tg)
                    idx = max(idx, ks[-1])
                if idx < done and not self.opt.get('keepvm', True): continue
                n = len(vm) - 1 - idx
                assert n <= 63
                out.append(X(f's_waitcnt vmcnt({n})', vmw=n))
                done = max(done, idx + 1)
                continue
            out.append(x)
            if x.t.startswith('buffer_'): vm.append(x.m.get('dma'))
        return out

    def nop_pass(self, L):
        from hazard import violations
        for _ in range(20):
            idx = [i for i, x in enumerate(L) if not (x.m.get('label') or x.m.get('comment'))]
            v = violations([L[i].t for i in idx])
            if not v: break
            last = -100
            todo = []
            for pos, short, why in v:
                if pos - last < 24 and todo: continue
                todo.append((pos, short, why)); last = pos
            for pos, short, why in reversed(todo):
                if self.opt.get('verbose'): print('NOP', short, why, L[idx[pos]].t)
                while short > 0:
                    k = min(short, 16)
                    L.insert(idx[pos], X(f's_nop {k - 1}', auto=True)); short -= k
        return L

    def proto_check(self, L):
        vm = []; vdone = 0
        lg = []; ldone = 0
        pub = set(); owner = {}; lastrd = {}; released = {}
        def region(tag):
            if tag[0] in ('K', 'V'): return [(tag[0], tag[1] % R)]
            return []
        def overl(tag):
            if tag[0] == 'K': b = (tag[1] % R) * 16384; return (b, b + 8192)
            if tag[0] == 'V': b = (tag[1] % R) * 16384 + 8192; return (b, b + 8192)
            if tag[0] in ('QA', 'QB'): return (QSTG, QSTG + 65536)
            if tag[0] == 'QC': return (QSTG + 65536, QSTG + 73728)
        live = {}
        errs = []
        qscaled = set()
        for n, x in enumerate(L):
            t = x.t
            if x.m.get('label') or x.m.get('comment'): continue
            if t.startswith('s_waitcnt'):
                m = re.search(r'vmcnt\((\d+)\)', t)
                if m: vdone = max(vdone, len(vm) - int(m.group(1)))
                m = re.search(r'lgkmcnt\((\d+)\)', t)
                if m: ldone = max(ldone, len(lg) - int(m.group(1)))
                continue
            if t == 's_barrier':
                fams = set(g for g in vm if g is not None)
                for g in fams:
                    ks = [k for k, h in enumerate(vm) if h == g]
                    if ks[-1] < vdone: pub.add(g)
                for f, k in lastrd.items():
                    released[f] = (k < ldone)
                continue
            if t.startswith('buffer_'):
                tg = x.m.get('dma')
                vm.append(tg)
                if tg is not None:
                    fam = tg if tg[0] in 'KV' else (tg[0],)
                    lo, hi = overl(fam)
                    for f2, (l2, h2) in list(live.items()):
                        if f2 != fam and l2 < hi and lo < h2 and not (f2[0][0] == 'Q' and fam[0][0] == 'Q'):
                            if f2 in lastrd and not released.get(f2, False): errs.append(f'DMA {tg} overwrites {f2} (not released) at {n}')
                            if f2 not in lastrd: errs.append(f'DMA {tg} overwrites never-read {f2} at {n}')
                            del live[f2]
                    live[fam] = (lo, hi)
                continue
            if t.startswith('ds_'):
                k = len(lg); lg.append(x)
                if 'rdq' in x.m:
                    ks = [i for i, h in enumerate(vm) if h == x.m['rdq']]
                    if not ks or ks[-1] >= vdone: errs.append(f'Q chunk {x.m["rdq"]} read before landed at {n}')
                for tg in x.m.get('rd', []):
                    if tg not in live: errs.append(f'read of dead/unloaded {tg} at {n}: {t}')
                    if tg[0] in 'KV':
                        if tg not in pub: errs.append(f'read of unpublished {tg} at {n}: {t}')
                    lastrd[tg] = k; released[tg] = False
        for e in errs[:20]: print('PROTO', e)
        self.proto_errs = errs

    def addresses(self):
        import subprocess, os, tempfile
        sys.path.insert(0, 'cdna_kernels')
        import cdna_launch as cl
        txt = cl.with_harness_metadata(self.text(), NAME, 6, launch_lists=True)
        open('_g3.s', 'w').write(txt)
        r = subprocess.run(['clang', '-x', 'assembler', '-target', 'amdgcn-amd-amdhsa', '-mcpu=gfx950', '_g3.s', '-o', '_g3.co'], capture_output=True, text=True)
        assert r.returncode == 0, r.stderr[:2000]
        d = subprocess.run(['llvm-objdump', '-d', '--mcpu=gfx950', '_g3.co'], capture_output=True, text=True).stdout
        ad = []
        base = None; on = False
        for line in d.splitlines():
            if line.endswith(f'<{NAME}>:'):
                base = int(line.split()[0], 16); on = True; continue
            if on and re.match(r'^[0-9a-f]+ <', line) and not re.search(r'<L_|<TP', line): break
            m = re.search(r'// ([0-9A-F]+):', line)
            if on and m: ad.append(int(m.group(1), 16) - base)
        ins = [x for x in self.L if not (x.m.get('label') or x.m.get('comment'))]
        assert len(ad) >= len(ins), (len(ad), len(ins))
        return dict(zip(map(id, ins), ad))

    def touch_pass(self):
        o = self.opt['touch']
        G = o.get('G', 4096); nch = o.get('chains', 4); first = o.get('first', G); mode = o.get('mode', 'chain')
        rounds = o.get('rounds', 1); PG = o.get('pages', 0)
        sI, sJ, sR = 56, 58, 60
        ent = [i for i, x in enumerate(self.L) if x.m.get('touch_entry')][0]
        npts = o.get('n0', 64)
        for it in range(4):
            E = [X('s_mov_b64 exec, 0')]
            if mode == 'chain':
                for w in range(nch - 1):
                    E.append(X(f's_cmp_eq_u32 s{sW}, {w}')); E.append(X(f's_cbranch_scc1 TP{w}'))
                E.append(X(f's_branch TP{nch - 1}'))
                E.append(X('L_TRET:', label=True))
            else:
                E += [X(f's_lshr_b32 s{sI}, s2, 3'), X(f's_lshl_b32 s{sI}, s{sI}, 2'), X(f's_add_u32 s{sI}, s{sI}, s{sW}'),
                      X(f's_mul_i32 s{sI}, s{sI}, {o.get("mul", 1)}'),
                      X(f's_mov_b32 s{sR}, {rounds}')]
                E.append(X('L_TLOOP:', label=True))
                k = 1
                while k * 2 * npts <= 128 * o.get('mul', 1) + rounds * o.get('step', 37): k *= 2
                while k >= 1:
                    E += [X(f's_cmp_ge_u32 s{sI}, {k * npts}'), X(f's_cselect_b32 s{sJ}, {k * npts}, 0'), X(f's_sub_u32 s{sI}, s{sI}, s{sJ}')]
                    k //= 2
                E += [X(f's_getpc_b64 s[{sJ}:{sJ+1}]'),
                      X(f's_lshl_b32 s{sI+1}, s{sI}, 2'),
                      X(f's_add_u32 s{sJ}, s{sJ}, s{sI+1}'), X(f's_addc_u32 s{sJ+1}, s{sJ+1}, 0'),
                      X(f's_add_u32 s{sJ}, s{sJ}, 24'), X(f's_addc_u32 s{sJ+1}, s{sJ+1}, 0'),
                      X(f's_setpc_b64 s[{sJ}:{sJ+1}]')]
                E += [X(f's_branch TP{k}') for k in range(npts)]
                E.append(X('L_TRET:', label=True))
                E += [X(f's_add_u32 s{sI}, s{sI}, {o.get("step", 37)}'), X(f's_sub_u32 s{sR}, s{sR}, 1'), X(f's_cmp_lg_u32 s{sR}, 0'), X('s_cbranch_scc1 L_TLOOP')]
            E.append(X('s_mov_b64 exec, -1'))
            L = self.L[:ent] + E + self.L[ent + 1:]
            save = self.L
            nlab = max(npts, nch)
            self.L = L + [X(f'TP{w}:', label=True) for w in range(nlab)]
            ad = self.addresses()
            self.L = save
            end = [i for i, x in enumerate(L) if x.t == 'L_end:'][0]
            tret = [i for i, x in enumerate(L) if x.t == 'L_TRET:'][0]
            out = []; shift = 0; nxt = first; k = 0; pts = []
            for i, x in enumerate(L):
                if tret < i < end and id(x) in ad and ad[id(x)] + shift >= nxt:
                    ismf = x.t.startswith('v_mfma')
                    late = ad[id(x)] + shift >= nxt + o.get('late', 64)
                    if ismf or late:
                        out.append(X(f'TP{k}:', label=True))
                        br = X('TPBR', tp=k); out.append(br); pts.append(br)
                        shift += 4; k += 1
                        while nxt <= ad[id(x)] + shift: nxt += G
                out.append(x)
            n = len(pts)
            if mode == 'chain' or n == npts: break
            npts = n
        for br in pts:
            kk = br.m['tp'] + nch
            br.t = f's_cbranch_execz TP{kk}' if (mode == 'chain' and kk < n) else 's_cbranch_execz L_TRET'
        for w in range(n, nch if mode == 'chain' else 0):
            idx = [i for i, x in enumerate(out) if x.t == 'L_TRET:'][0]
            out.insert(idx, X(f'TP{w}:', label=True))
        self.L = out
        print('touch points:', n)

    def text(self):
        hdr = f"""; GQA softmax attention forward, gfx950. Generated by gen/gen3.py (hand-written generator).
; @launch grid=(256,1,1) block=(256,1,1) lds=163840
.amdgcn_target "amdgcn-amd-amdhsa--gfx950"
.text
.p2align 12
.globl {NAME}
.p2align 8
.type {NAME},@function
{NAME}:
"""
        ftr = f"""
.section .rodata,"a"
.p2align 6
.amdhsa_kernel {NAME}
  .amdhsa_next_free_vgpr 512
  .amdhsa_next_free_sgpr 64
  .amdhsa_accum_offset 256
  .amdhsa_group_segment_fixed_size 0
  .amdhsa_kernarg_size 48
  .amdhsa_user_sgpr_count 2
  .amdhsa_user_sgpr_kernarg_segment_ptr 1
  .amdhsa_system_sgpr_workgroup_id_x 1
.end_amdhsa_kernel
"""
        body = []
        for x in self.L:
            if x.m.get('label') or x.m.get('raw'): body.append(x.t)
            else: body.append('  ' + x.t)
        return hdr + '\n'.join(body) + ftr


eSR, eSO, eINF = T, T + 2, T + 3
eRC = T + 4
eT = T + 6
eWA = NEG['A']
pV_base = vV[0]


def make(path, **opt):
    g = Gen(opt)
    g.build()
    g.L = [x for x in g.L if x is not None]
    g.passes()
    if opt.get('touch'): g.touch_pass()
    errs = check([x.t for x in g.L if not x.m.get('raw')], 'linear')
    for e in errs: print('HAZARD', e)
    open(path, 'w').write(g.text())
    return g

if __name__ == '__main__':
    make('g3.s')
```

```python
import re

def regs_of(tok):
    tok = tok.strip()
    neg = tok.lstrip('-')
    m = re.fullmatch(r'(?:abs\()?([vas])(\d+)\)?', neg)
    if m: return [(m.group(1), int(m.group(2)))]
    m = re.fullmatch(r'([vas])\[(\d+):(\d+)\]', neg)
    if m: return [(m.group(1), i) for i in range(int(m.group(2)), int(m.group(3)) + 1)]
    if neg == 'vcc': return [('s', 106), ('s', 107)]
    if neg == 'm0': return [('m', 0)]
    if neg == 'exec': return [('e', 0)]
    return []

TRANS = ('v_exp_f32', 'v_log_f32', 'v_rcp_f32', 'v_rsq_f32', 'v_sqrt_f32', 'v_sin_f32', 'v_cos_f32')

class Ins:
    def __init__(self, text):
        self.text = text
        t = text.split(';')[0].strip()
        self.label = t.endswith(':')
        parts = t.split(None, 1)
        self.op = parts[0] if parts else ''
        ops = []
        if len(parts) > 1:
            ops = [o.strip() for o in re.split(r',(?![^\[]*\])', parts[1])]
            if ops:
                last = ops[-1].split()
                ops[-1] = last[0] if last else ''
                self.mods = last[1:]
        self.ops = ops
        op = self.op
        self.is_mfma = op.startswith('v_mfma')
        self.is_valu = op.startswith('v_') and not self.is_mfma
        self.is_trans = any(op.startswith(x) for x in TRANS)
        self.is_ds = op.startswith('ds_')
        self.is_vmem = op.startswith('buffer_') or op.startswith('global_')
        self.is_salu = op.startswith('s_')
        self.w = []; self.r = []
        R = [regs_of(o) for o in ops]
        if self.is_mfma:
            self.w = R[0]; self.A = R[1]; self.B = R[2]; self.C = R[3]; self.r = R[1] + R[2] + R[3]
        elif op.startswith('v_cmp'):
            self.w = R[0]; self.r = sum(R[1:], [])
        elif op.startswith('v_readfirstlane') or op.startswith('v_readlane'):
            self.w = R[0]; self.r = sum(R[1:], [])
        elif op.startswith('v_permlane32_swap') or op.startswith('v_permlane16_swap'):
            self.w = R[0] + R[1]; self.r = R[0] + R[1]
        elif op.startswith('v_fmac') or op.startswith('v_dot2c'):
            self.w = R[0]; self.r = sum(R, [])
        elif self.is_valu:
            self.w = R[0]; self.r = sum(R[1:], [])
            if op.startswith('v_cndmask') and len(ops) == 3: self.r += regs_of('vcc')
        elif self.is_ds:
            if 'read' in op: self.w = R[0]; self.r = sum(R[1:], [])
            else: self.r = sum(R, [])
        elif self.is_vmem:
            if 'lds' in t.split(): self.r = sum(R, []) + [('m', 0)]
            elif 'load' in op: self.w = R[0]; self.r = sum(R[1:], [])
            else: self.r = sum(R, [])
        elif self.is_salu:
            if op.startswith('s_cmp') or op.startswith('s_bitcmp') or op.startswith('s_cbranch') or op in ('s_branch', 's_barrier', 's_waitcnt', 's_nop', 's_endpgm', 's_setprio', 's_sleep'):
                self.r = sum(R, [])
            else:
                self.w = R[0] if R else []; self.r = sum(R[1:], [])
    def states(self):
        if self.op == 's_nop': return int(self.ops[0], 0) + 1
        return 1

def violations(lines):
    ins = [Ins(l) for l in lines]
    raw = _scan(ins)
    best = {}
    for (i, need, dist, why, p, c) in raw:
        s = need - dist
        if i not in best or best[i][0] < s: best[i] = (s, why)
    return [(i, best[i][0], best[i][1]) for i in sorted(best)]

def check(lines, name=''):
    ins = [Ins(l) for l in lines if l.strip() and not l.strip().startswith(';') and not l.strip().startswith('.')]
    ins = [i for i in ins if not i.label and i.op]
    return [f'{name}: need {need} have {dist} [{why}]: "{p.text.strip()}" -> "{c.text.strip()}"' for (i, need, dist, why, p, c) in _scan(ins)]

def _scan(ins):
    errs = []
    n = len(ins)
    for i, c in enumerate(ins):
        dist = 0
        j = i - 1
        while j >= 0 and dist < 24:
            p = ins[j]
            need = 0; why = ''
            pw = set(p.w); cr = set(c.r); cw = set(c.w)
            vw = {x for x in pw if x[0] in 'va'}
            sw = {x for x in pw if x[0] == 's'}
            if p.is_mfma:
                passes = 8 if '32x32x16' in p.op else 4
                rw = {8: 12, 4: 8}[passes]
                if c.is_mfma:
                    if vw & set(c.A + c.B): need, why = rw, 'mfma D -> mfma A/B'
                    elif vw & set(c.C):
                        if set(c.C) == vw and c.op == p.op: need = 0
                        else: need, why = {8: 10, 4: 6}[passes], 'mfma D -> mfma C overlap'
                elif (c.is_valu or c.is_ds or c.is_vmem) and (vw & (cr | cw)): need, why = rw, 'mfma D -> valu/mem rw'
                if c.is_valu and (set(p.C) & cw) and not (vw & cw):
                    need2 = {8: 7, 4: 3}[passes]
                    if need2 > need: need, why = need2, 'mfma C read -> valu write WAR'
            elif p.is_valu:
                if c.is_mfma and (vw & cr): need, why = 2, 'valu -> mfma operand'
                if p.is_trans and c.is_valu and not c.is_trans and (vw & cr): need, why = max(need, 1), 'trans -> valu'
                if c.op.startswith('v_permlane') and (vw & cr): need, why = max(need, 2), 'valu -> permlane'
                if (c.op.startswith('v_readfirstlane') or c.op.startswith('v_readlane')) and (vw & cr): need, why = max(need, 1), 'valu->readlane'
                if sw & cr:
                    if c.is_valu: need, why = max(need, 2), 'valu sgpr -> valu read'
                    elif c.is_vmem: need, why = max(need, 5), 'valu sgpr -> vmem'
                    elif c.is_salu: need, why = max(need, 4), 'valu sgpr -> salu (pad)'
            elif p.is_salu:
                if ('m', 0) in pw and c.is_vmem and ('m', 0) in cr: need, why = 1, 'm0 -> dma'
            if p.is_vmem and 'store' in p.op and 'x4' in p.op:
                data = set(regs_of(p.ops[0]))
                if cw & data:
                    need, why = max(need, 2 if c.is_valu else 1), 'store data WAR'
            if need > dist:
                errs.append((i, need, dist, why, p, c))
            dist += p.states()
            j -= 1
    return errs
```

```python
import sys, re; sys.path.insert(0,'gen')
import gen3
KD = """
.amdhsa_kernel %s
  .amdhsa_next_free_vgpr 64
  .amdhsa_next_free_sgpr 64
  .amdhsa_accum_offset 64
  .amdhsa_group_segment_fixed_size 0
  .amdhsa_kernarg_size 48
  .amdhsa_user_sgpr_count 2
  .amdhsa_user_sgpr_kernarg_segment_ptr 1
  .amdhsa_system_sgpr_workgroup_id_x 1
.end_amdhsa_kernel
"""
def tiny(name, off):
    L=[]; e=L.append
    e('.p2align 8'); e(f'.type {name},@function'); e(f'{name}:')
    e('  s_cmp_ge_u32 s2, 1'); e(f'  s_cbranch_scc1 {name}_done')
    e('  s_load_dwordx2 s[4:5], s[0:1], 40')
    e('  v_mov_b32 v1, 0')
    e('  s_waitcnt lgkmcnt(0)')
    e('  s_mov_b32 s8, s4'); e('  s_and_b32 s9, s5, 0xffff'); e('  s_mov_b32 s10, 0x1000000'); e('  s_mov_b32 s11, 0x20000')
    e('  s_memrealtime s[20:21]'); e('  s_waitcnt lgkmcnt(0)')
    e('  v_mov_b32 v2, s20')
    e(f'  s_mov_b32 s12, {off}')
    e('  buffer_store_dword v2, v1, s[8:11], s12 offen')
    e(f'{name}_done:'); e('  s_endpgm')
    return '\n'.join(L) + '\n', KD % name
def probe(kind, a, b, K):
    L=[]; e=L.append
    e('.p2align 8'); e('.type probe_kernel,@function'); e('probe_kernel:')
    e('  s_memrealtime s[30:31]')
    e('  s_cmp_ge_u32 s2, 1'); e('  s_cbranch_scc1 P_done')
    e('  s_load_dwordx2 s[4:5], s[0:1], 40')
    e('  v_and_b32 v0, 63, v0')
    e('  v_lshlrev_b32 v1, 8, v0')
    e('  v_mov_b32 v2, 0'); e('  v_mov_b32 v3, -1'); e('  v_mov_b32 v4, 0'); e('  v_mov_b32 v6, 0')
    e('  s_waitcnt lgkmcnt(0)')
    e('  s_mov_b32 s8, s4'); e('  s_and_b32 s9, s5, 0xffff'); e('  s_mov_b32 s10, 0x1000000'); e('  s_mov_b32 s11, 0x20000')
    for i in range(16):
        e(f'  s_mov_b32 s12, {i*64*256}')
        e(f'  buffer_load_dword v{8+i}, v1, s[8:11], s12 offen offset:{a*4}')
        e(f'  buffer_load_dword v{24+i}, v1, s[8:11], s12 offen offset:{b*4}')
    e('  s_mov_b32 s12, 0x800000'); e('  buffer_load_dword v40, v6, s[8:11], s12 offen')
    e('  s_mov_b32 s12, 0x800100'); e('  buffer_load_dword v41, v6, s[8:11], s12 offen')
    e('  s_waitcnt vmcnt(0)')
    for i in range(16):
        e(f'  v_min_u32 v3, v3, v{8+i}')
        e(f'  v_max_u32 v4, v4, v{24+i}')
    e('  s_mov_b32 s14, -1'); e('  s_mov_b32 s15, 0')
    e('  s_nop 4')
    for l in range(64):
        e(f'  v_readlane_b32 s17, v3, {l}'); e(f'  v_readlane_b32 s18, v4, {l}')
        e('  s_nop 3')
        e('  s_min_u32 s14, s14, s17'); e('  s_max_u32 s15, s15, s18')
    e('  v_readfirstlane_b32 s16, v40'); e('  v_readfirstlane_b32 s17, v41'); e('  s_nop 3')
    if kind == 'start': e('  s_sub_u32 s13, s14, s16')
    elif kind == 'end': e('  s_sub_u32 s13, s30, s15')
    elif kind == 'tt': e('  s_sub_u32 s13, s17, s16')
    elif kind == 'pt': e('  s_sub_u32 s13, s30, s17')
    elif kind == 't2end': e('  s_sub_u32 s13, s17, s15')
    e(f'  s_mul_i32 s13, s13, {K}')
    e('  s_min_u32 s13, s13, 30000')
    e('  s_memrealtime s[20:21]'); e('  s_waitcnt lgkmcnt(0)')
    e('  s_add_u32 s22, s20, s13')
    e('P_loop:')
    e('  s_memrealtime s[24:25]'); e('  s_waitcnt lgkmcnt(0)')
    e('  s_sub_u32 s26, s24, s22'); e('  s_cmp_lt_i32 s26, 0'); e('  s_cbranch_scc1 P_loop')
    e('P_done:'); e('  s_endpgm')
    return '\n'.join(L) + '\n', KD % 'probe_kernel'

def mk(path, order, kind, a, b, K, **opt):
    gen3.make(path, stamps=True, allreal=True, lite=True, **opt)
    s = open(path).read()
    m = re.search(r'; @launch (grid=\S+ block=\S+ lds=\d+)', s)
    one = 'grid=(1,1,1) block=(64,1,1) lds=0'
    d = {'M': f'; @launch kernel=standalone__gqa_softmax__near_ridge_kernel {m.group(1)}',
         'P': f'; @launch kernel=probe_kernel {one}', '1': f'; @launch kernel=t1_kernel {one}', '2': f'; @launch kernel=t2_kernel {one}'}
    s = s.replace(m.group(0), '\n'.join(d[c] for c in order))
    code, kd = probe(kind, a, b, K)
    if '1' in order:
        c, k = tiny('t1_kernel', 0x800000); code += c; kd += k
    if '2' in order:
        c, k = tiny('t2_kernel', 0x800100); code += c; kd += k
    s = s.replace('\n.section .rodata,"a"', '\n' + code + '.section .rodata,"a"')
    s = s + kd
    open(path, 'w').write(s)

if __name__ == '__main__':
    C = 'cdna_kernels/'
    o = dict(F=12, xq=3, touch=dict(G=1024, mode='table', first=2048))
    mk(C+'z_0.s', '12MP', 'tt', 0, 35, 0, **o)
    mk(C+'z_tt.s', '12MP', 'tt', 0, 35, 4, **o)
    mk(C+'z_st.s', '21MP', 'start', 0, 35, 4, **o)
    mk(C+'z_0b.s', '1M2P', 'tt', 0, 35, 0, **o)
    mk(C+'z_end.s', '1M2P', 't2end', 0, 35, 4, **o)
    mk(C+'z_endp.s', '12MP', 'end', 0, 35, 4, **o)
```

```python
import sys, math, struct, re
from hazard import Ins, regs_of, check

NAME = 'standalone__gqa_softmax__near_ridge_kernel'
def f2u(x): return struct.unpack('<I', struct.pack('<f', x))[0]

OA, OB = 0, 64
SBUF = [128, 144]
NEG = {'A': 160, 'B': 168, 'C': 176}
LL = {'A': 184, 'B': 192, 'C': 200}
vK = [208, 209, 210]
vV0 = [211, 212, 213]
vV1 = [214, 215, 216]
vKc, vVc0, vVc1 = 217, 218, 219
vDKa, vDKb, vDVa, vDVb = 220, 221, 222, 223
vLane, vST = 224, 225
MM = {'A': 226, 'B': 228, 'C': 230}
vBad = 232
T = 233
pQ = 64
pQf, pCf, pQs, pQc = 68, 70, 72, 73
pT = 74
pSC = 84
pSM = 96
aOC, aQA, aQB, aQC, aKF, aVF, aONE = 0, 64, 96, 128, 160, 192, 224
aPC = 16
vPw = 255
vL16, vPa = 253, 254
vVh0, vVh1 = MM['C'], MM['C'] + 1
sWV = 61
sSO = 64
QQ = {'A': aQA, 'B': aQB, 'C': aQC}
OO = {'A': OA, 'B': OB}

sQ, sK, sV, sO = 12, 16, 20, 24
sW, sW2k, sSoff = 28, 29, 30
sLo, sRng, sQo = 31, 32, 33
sC = 34
sMask, sThr, sPass, sT1, sT2, sT3, sMJ = 36, 37, 38, 39, 40, 41, 42
sW16k = 43
sCo = 44
sE1, sE2 = 48, 49
sTab = 64

R = 10
QSTG = 88 * 1024
STG = 96 * 1024
PART, PB = 16896, 512

def vr(b, n): return f'v[{b}:{b+n-1}]'
def ar(b, n): return f'a[{b}:{b+n-1}]'
def sr(b, n): return f's[{b}:{b+n-1}]'


class X:
    __slots__ = ('t', 'm')
    def __init__(self, t, **m): self.t = t; self.m = m
    def __repr__(self): return self.t


def isx(i): return isinstance(i, X)
def tx(i): return i.t if isx(i) else i


def is_valu(x):
    t = tx(x)
    return t.startswith('v_') and not t.startswith('v_mfma')
def vcost(x):
    t = tx(x)
    if t.startswith(('v_exp', 'v_rcp', 'v_permlane', 'v_pk_')): return 8
    return 4
def gapT(fl):
    V = 0; u = 0; tmin = 16; t = None
    pre = 0
    T = 0
    seenv = False; late = 0
    for x in fl:
        s = tx(x)
        if is_valu(x) or s.startswith('s_nop'):
            V += vcost(x) if is_valu(x) else 4; seenv = True; continue
        if s.startswith('ds_read'): w, ex = 1, 0
        elif s.startswith('ds_write_b128'): w, ex = 4, 4
        elif s.startswith('ds_write'): w, ex = 2, 4
        elif s.startswith('buffer_store'): w, ex = 4, 4
        elif s.startswith('buffer_load'): w, ex = 2, 0
        elif s == 's_barrier': w, ex = 5, 6
        else:
            if seenv: V += 4
            continue
        if seenv and not late: late = 8
        u += w; tmin = max(tmin, 8 + 4 * u + ex + V + late)
    return max(tmin, 8 + 4 * u + V + (late - 4 if late else 0))
def bubble(fl):
    out = []
    for x in fl:
        k = len(out)
        if not is_valu(x) and x.t not in ('WAITVM', 'WAITLG') or x.t in ('WAITVM', 'WAITLG'):
            if not is_valu(x):
                ix = Ins(x.t); r, w = set(ix.r), set(ix.w)
                if x.t.startswith(('s_cselect', 's_cbranch', 's_addc')): r = r | {('scc', 0)}
                while k > 0 and is_valu(out[k - 1]) and not x.t.startswith('s_nop'):
                    iy = Ins(out[k - 1].t); ry, wy = set(iy.r), set(iy.w)
                    if (wy & (r | w)) or (ry & w): break
                    k -= 1
        out.insert(k, x)
    return out


class Gen:
    def __init__(self, opt):
        self.L = []
        self.opt = opt
        self.F = opt.get('F', 12)
        self.vsum = opt.get('vsum', False)
        self.NP = 8 if self.vsum else 9
    def __call__(self, s, **m): self.L.append(s if isx(s) else X(s, **m))
    def label(self, s): self.L.append(X(s + ':', label=True))
    def c(self, s): self.L.append(X('; ' + s, comment=True))
    def raw(self, s): self.L.append(X(s, comment=True, raw=True))
    def emit(self, l):
        for s in l: self(s)

    def stamp_l(self, idx, real=False):
        if not self.opt.get('stamps'): return []
        if self.opt.get('smap'):
            if idx not in self.opt['smap']: return []
            return [X('s_memrealtime s[50:51]'), X('s_waitcnt lgkmcnt(0)'), X('s_nop 1'),
                    X(f'v_writelane_b32 v{vST}, s50, {self.opt["smap"].index(idx)}'), X('s_nop 1')]
        if self.opt.get('lite') and idx not in (0, 1, 4, 32, 35, 36, 37, 38) + tuple(self.opt.get('keep', ())) and not (5 <= idx <= 31 or 40 <= idx <= 47): return []
        if idx >= 48 and idx not in self.opt.get('keep', ()): return []
        if self.opt.get('both') and 5 <= idx <= 31:
            return [X('s_memtime s[50:51]'), X('s_memrealtime s[52:53]'), X('s_waitcnt lgkmcnt(0)'),
                    X(f'v_writelane_b32 v{vST}, s50, {idx}'), X(f'v_writelane_b32 v{vST}, s52, {idx + 32}')]
        return [X('s_memrealtime s[50:51]' if (real or self.opt.get('allreal')) else 's_memtime s[50:51]'),
                X('s_waitcnt lgkmcnt(0)'), X(f'v_writelane_b32 v{vST}, s50, {idx}')]
    def stamp(self, idx, real=False): self.emit(self.stamp_l(idx, real))

    def dma(self, vo, srd, soff, off, tag):
        fl = self.opt.get('ldflag', 'nt')
        o = f' offset:{off}' if off else ''
        fl = f' {fl}' if fl else ''
        return X(f'buffer_load_dwordx4 v{vo}, {sr(srd,4)}, {soff} offen{o}{fl} lds', dma=tag)

    def tile_dma(self, kind, j, tab=False):
        if kind == 'QC':
            assert tab
            sq = 's80' if self.opt.get('krot') else f's{sTab + 8}'
            return [X(f's_add_u32 m0, s{sW2k}, {QSTG + 65536}')], [self.dma(vDKa, sQ, sq, 0, ('QC', 0)), self.dma(vDKb, sQ, sq, 1024, ('QC', 1))]
        slot = j % R
        lo = slot * 16384 + (8192 if kind == 'V' else 0)
        su = [X(f's_add_u32 m0, s{sW2k}, {lo}') if lo else X(f's_mov_b32 m0, s{sW2k}')]
        if tab: so = f's{sTab + j}'
        else:
            so = f's{sSoff}'
            if self.opt.get('krot'):
                if j: su += [X(f's_add_u32 s{sSoff}, s81, {j * 8192}'), X(f's_and_b32 s{sSoff}, s{sSoff}, 0x1ffff')]
                else: su.append(X(f's_mov_b32 s{sSoff}, s81'))
            else: su.append(X(f's_mov_b32 s{sSoff}, {j * 8192}'))
        tag = (kind, j)
        if kind == 'V': d = [self.dma(vDVa, sV, so, 0, tag), self.dma(vDVb, sV, so, 1024, tag)]
        else: d = [self.dma(vDKa, sK, so, 0, tag), self.dma(vDKb, sK, so, 1024, tag)]
        return su, d

    MF = 'v_mfma_f32_16x16x32_bf16'
    def mfma_qk(self, tile, sb, n, c0):
        q, kt, ks = n >> 3, (n >> 2) & 1, n & 3
        if self.opt.get('qkord') == 1 and not getattr(self, 'lin', False):
            ks = n >> 2; kt, q = [(0, 0), (1, 0), (1, 1), (0, 1)][n & 3]
        elif self.opt.get('qkord') == 2 and not getattr(self, 'lin', False):
            ks = n >> 2; kt, q = [(0, 0), (1, 0), (1, 1), (0, 1)][(n & 3) ^ (3 if ks & 1 else 0)]
        d = vr(sb + 8 * q + 4 * kt, 4)
        c = d if ks else ('0' if c0 == '0' else vr(c0 + 4 * q, 4))
        return X(f'{self.MF} {d}, {ar(aKF + 4 * (4 * kt + ks), 4)}, {ar(QQ[tile] + 16 * q + 4 * ks, 4)}, {c}')
    def mfma_pv(self, tile, sb, n, first=False):
        q, x = divmod(n, self.NP)
        b = vr(sb + 8 * q, 4)
        if x == 8:
            o = vr(LL[tile] + 4 * q, 4); a = ar(aONE, 4)
        elif tile == 'C' and self.opt.get('cpx'):
            o = ar(aOC + 8 * q + 4 * (x & 1), 4); a = ar(aVF + 4 * x, 4); b = ar(aPC + 8 * (x >> 1) + 4 * q, 4)
            first = first and x < 2
        else:
            o = ar(aOC + 32 * q + 4 * x, 4) if tile == 'C' else vr(OO[tile] + 32 * q + 4 * x, 4)
            a = ar(aVF + 4 * x, 4)
        return X(f'{self.MF} {o}, {a}, {b}, {"0" if first else o}')
    def exp(self, sb, r): return X(f'v_exp_f32 v{sb+r}, v{sb+r}')
    def cvt(self, sb, q, k): return X(f'v_cvt_pk_bf16_f32 v{sb+8*q+k}, v{sb+8*q+2*k}, v{sb+8*q+2*k+1}')
    def padd(self, tile, sb, q, k):
        l = LL[tile] + 4 * q + (2 * (k & 1) if self.opt.get('vsum2') else 0)
        return X(f'v_pk_add_f32 {vr(l,2)}, {vr(l,2)}, {vr(sb+8*q+2*k,2)}')
    def cvts(self, tile, sb, q, k):
        return ([self.padd(tile, sb, q, k)] if self.vsum else []) + [self.cvt(sb, q, k)]
    def lreduce(self, tile, q, tmp):
        l = LL[tile] + 4 * q
        out = []
        if self.opt.get('vsum2'): out.append(f'v_pk_add_f32 {vr(l,2)}, {vr(l,2)}, {vr(l+2,2)}')
        out.append(f'v_add_f32 v{l}, v{l}, v{l+1}')
        for sw in ('v_permlane16_swap_b32', 'v_permlane32_swap_b32'):
            out += [f'v_mov_b32 v{tmp}, v{l}', 's_nop 0', f'{sw} v{l}, v{tmp}', 's_nop 0', f'v_add_f32 v{l}, v{l}, v{tmp}']
        return [X(t) for t in out]

    def kread(self, src, idx):
        kt, ks = idx >> 2, idx & 3
        off = kt * 4096 + ks * 256
        if src[0] == 'p':
            slot = src[1] % R
            reg = vK[slot >> 2]; off += (slot & 3) * 16384
            tags = [('K', src[1])]
        else:
            reg = vKc
            tags = [('K', 4 * src[1] + w) for w in range(4)]
        return X(f'ds_read_b128 {ar(aKF+4*idx,4)}, v{reg}' + (f' offset:{off}' if off else ''), rd=tags, own=(src[0] == 'c'))
    def vwin(self, i, hi):
        return ((4 * i + 2 * hi) % R) >> 2
    def vwin_set(self, win, hi=False):
        r0, r1 = (vVh0, vVh1) if hi else (vVc0, vVc1)
        return [X(f'v_add_u32 v{r0}, s{sWV}, v{vV0[win]}'), X(f'v_add_u32 v{r1}, s{sWV}, v{vV1[win]}')]
    def vwin_upd(self, i):
        out = []
        if self.vwin(i, 0) != self.vcur: self.vcur = self.vwin(i, 0); out += self.vwin_set(self.vcur)
        if self.vwin(i, 1) != self.vcurh: self.vcurh = self.vwin(i, 1); out += self.vwin_set(self.vcurh, True)
        return out
    def pwin(self, i):
        w = {((4 * i + t) % R) >> 2 for t in range(4)} - {0}
        assert len(w) <= 1
        return w.pop() if w else 0
    def pread(self, i, t, q):
        tile = 4 * i + t; slot = tile % R
        if self.opt.get('plin', True):
            off = (slot & 3) * 16384 + q * 1024; reg = vPa if slot >> 2 else vL16
        else:
            off = (slot & 3) * 16384 + q * 256; reg = vK[slot >> 2]
        return X(f'ds_read_b128 {ar(aPC + 8*t + 4*q, 4)}, v{reg}' + (f' offset:{off}' if off else ''), rd=[('K', tile)], pr=('P', i, q))
    def pwrite(self, i, sb, q):
        k = 1024 if self.opt.get('plin', True) else 256
        return X(f'ds_write_b128 v{vPw}, {vr(sb + 8*q, 4)}' + (f' offset:{q * k}' if q else ''),
                 ovw=[('K', 4 * i + w) for w in range(4)], ownok=True, pw=('P', i, q))
    def paddr(self, i):
        if not self.opt.get('plin', True): return [X(f'v_add_u32 v{vPw}, s{sCo + i}, v{vK[0]}')]
        out = [X(f'v_add_u32 v{vPw}, s{sCo + i}, v{vL16}')]
        return out
    def paddr_r(self, i):
        if not self.opt.get('plin', True) or not self.pwin(i): return []
        return [X(f'v_add_u32 v{vPa}, {self.pwin(i) * 65536}, v{vL16}')]
    def vread(self, src, dt, e):
        o = 8192 + e * 4096 + (dt >> 1) * 256
        if src[0] == 'c' and self.opt.get('cpx'):
            tile = 4 * src[1] + (dt >> 1); slot = tile % R
            assert slot >> 2 == self.vwin(src[1], dt >> 2)
            o = 8192 + e * 4096 + (slot & 3) * 16384
            r0, r1 = (vVh0, vVh1) if (self.opt.get('cpx') == 2 and dt >= 4) else (vVc0, vVc1)
            return X(f'ds_read_b64_tr_b16 {ar(aVF+4*dt+2*e,2)}, v{r1 if dt & 1 else r0} offset:{o}', rd=[('V', tile)], vw=slot >> 2)
        if src[0] == 'p':
            slot = src[1] % R
            reg = (vV1 if dt & 1 else vV0)[slot >> 2]; o += (slot & 3) * 16384
            tags = [('V', src[1])]
        else:
            reg = vVc1 if dt & 1 else vVc0
            tags = [('V', 4 * src[1] + w) for w in range(4)]
        return X(f'ds_read_b64_tr_b16 {ar(aVF+4*dt+2*e,2)}, v{reg} offset:{o}', rd=tags)

    def maxtree(self, tile, sb):
        out = []
        for i in range(4):
            for q in range(2):
                m = MM[tile] + q
                out.append(X(f'v_max3_f32 v{m}, v{m}, v{sb+8*q+2*i}, v{sb+8*q+2*i+1}'))
        return out
    def finish_max(self, tile, tmp):
        m, n = MM[tile], NEG[tile]
        out = []
        for sw in ('v_permlane16_swap_b32', 'v_permlane32_swap_b32'):
            out += [f'v_mov_b32 v{tmp}, v{m}', f'v_mov_b32 v{tmp+1}, v{m+1}', 's_nop 0',
                    f'{sw} v{m}, v{tmp}', f'{sw} v{m+1}, v{tmp+1}', 's_nop 0',
                    f'v_max_f32 v{m}, v{m}, v{tmp}', f'v_max_f32 v{m+1}, v{m+1}, v{tmp+1}']
        out += [f'v_sub_f32 v{n}, 0, v{m}', f'v_sub_f32 v{n+4}, 0, v{m+1}']
        out += [f'v_mov_b32 v{n+4*q+r}, v{n+4*q}' for r in range(1, 4) for q in range(2)]
        return [X(s) for s in out]
    def maxtree_q(self, tile, sb, q):
        m = MM[tile] + q
        return [X(f'v_max3_f32 v{m}, v{m}, v{sb+8*q+2*i}, v{sb+8*q+2*i+1}') for i in range(4)]
    def finish_max_q(self, tile, q, tmp):
        m, n = MM[tile] + q, NEG[tile] + 4 * q
        out = []
        for sw in ('v_permlane16_swap_b32', 'v_permlane32_swap_b32'):
            out += [f'v_mov_b32 v{tmp}, v{m}', 's_nop 1', f'{sw} v{m}, v{tmp}', 's_nop 1', f'v_max_f32 v{m}, v{m}, v{tmp}']
        out += [f'v_sub_f32 v{n+r}, 0, v{m}' for r in range(4)]
        return [X(t) for t in out]
    def addneg_q(self, tile, sb, q): return [X(f'v_add_f32 v{sb+8*q+r}, v{sb+8*q+r}, v{NEG[tile]+4*q}') for r in range(8)]
    def qraw(self, tile, q, va, d):
        out = []
        for ks in range(4):
            off = q * 4096 + ks * 256 + (8192 if tile == 'B' else 0)
            out.append(X(f'ds_read_b128 {vr(d + 4*ks, 4)}, v{va}' + (f' offset:{off}' if off else ''), rd=[('Q' + tile,)], rdq=('Q' + tile, 4 * q + 3)))
        return out
    def qscale(self, tile, q, ks, d, t, pk=True):
        w = []
        for i in range(4): w.append(f'v_lshlrev_b32 v{t+2*i}, 16, v{d+i}')
        for i in range(4): w.append(f'v_and_b32 v{t+2*i+1}, s{sMask}, v{d+i}')
        if pk:
            for i in range(4): w.append(f'v_pk_mul_f32 {vr(t+2*i,2)}, {vr(t+2*i,2)}, {sr(sC,2)}')
        else:
            for i in range(8): w.append(f'v_mul_f32 v{t+i}, s{sC}, v{t+i}')
        for i in range(4): w.append(f'v_cvt_pk_bf16_f32 v{d+i}, v{t+2*i}, v{t+2*i+1}')
        for i in range(4): w.append(f'v_accvgpr_write_b32 a{QQ[tile]+16*q+4*ks+i}, v{d+i}')
        return [X(x) for x in w]
    def addneg(self, tile, sb): return [X(f'v_add_f32 v{sb+r}, v{sb+r}, v{NEG[tile]+4*(r>>3)}') for r in range(16)]
    def smq(self, sb, q, cv=True, tile=None):
        e = lambda r: [self.exp(sb, 8 * q + r)]
        c = lambda k: self.cvts(tile, sb, q, k)
        if not cv: return [e(r)[0] for r in range(8)]
        return sum([e(0), e(1), e(2), c(0), e(3), e(4), c(1), e(5), e(6), c(2), e(7), [X('s_nop 0')], c(3)], [])

    def scale_chunk(self, va, off, tag, d=None, t=None):
        late = d is not None
        if d is None: d, t = pSC, pSC + 4
        o = f' offset:{off}' if off else ''
        rd = [X(f'ds_read_b128 {vr(d,4)}, v{va}{o}', rd=[tag])]
        w = []
        for i in range(4): w.append(f'v_lshlrev_b32 v{t+2*i}, 16, v{d+i}')
        for i in range(4): w.append(f'v_and_b32 v{t+2*i+1}, s{sMask}, v{d+i}')
        if late:
            for i in range(8): w.append(f'v_mul_f32 v{t+i}, s{sC}, v{t+i}')
        else:
            for i in range(4): w.append(f'v_pk_mul_f32 {vr(t+2*i,2)}, {vr(t+2*i,2)}, {sr(sC,2)}')
        for i in range(4): w.append(f'v_cvt_pk_bf16_f32 v{d+i}, v{t+2*i}, v{t+2*i+1}')
        wr = [X(f'ds_write_b128 v{va}, {vr(d,4)}{o}', wr=tag)]
        return rd, [X(s) for s in w], wr

    def qfrag(self, tile, va, extra=0):
        tag = ('Q' + tile,)
        out = []
        for q in range(2):
            for ks in range(4):
                off = q * 4096 + ks * 256 + extra
                out.append(X(f'ds_read_b128 {ar(QQ[tile]+16*q+4*ks,4)}, v{va}' + (f' offset:{off}' if off else ''), rd=[tag]))
        return out

    def waitvm(self, tags): return X('WAITVM', vm=list(tags))
    def waitlg(self, tag): return X('WAITLG', lgw=tag)
    def barrier(self): return X('s_barrier')

    def src_of(self, it): return ('c', it[1]) if it[0] == 'C' else ('p', it[1])

    def block(self, bi, cur, nxt, nn, prev_cur, dmas, extras, first_pv=False):
        o = self.opt
        cb, nb = SBUF[bi & 1], SBUF[(bi + 1) & 1]
        NP = self.NP
        G = 16 + 2 * NP
        fill = [[] for _ in range(G)]; load = [0] * G
        ct, nt = cur[0], nxt[0]
        dcost = o.get('dcost', 8)
        def cost(x):
            t = x.t
            if t.startswith('v_exp') or t.startswith('v_rcp'): return 8
            if t.startswith('buffer_'): return dcost
            return 4
        cm2 = o.get('cm2') and bi - self.off < o.get('cm2_to', 99)
        if o.get('cm2') == 'end': cm2 = (o.get('cpx') and 'C' in (cur[0], nxt[0])) or bi - self.off >= self.bA
        def put(g, x): fill[g].append(x); load[g] += cost(x)
        def dT(g, x): return gapT(bubble(fill[g] + [x])) - gapT(bubble(fill[g]))
        def place(x, lo, hi):
            hi = max(lo, hi)
            if cm2:
                hi = min(hi, G - 1)
                g = min(range(lo, hi + 1), key=lambda g: (dT(g, x), g)); put(g, x); return g
            for g in range(lo, hi + 1):
                if load[g] + cost(x) <= 8: put(g, x); return g
            g = min(range(lo, hi + 1), key=lambda g: load[g]); put(g, x); return g
        def place_seq(items, lo, hi):
            g = 0; n = len(items)
            for i, x in enumerate(items):
                g = place(x, max(g, lo(i)), hi - (n - 1 - i) // 2)
            return g
        cpx = o.get('cpx')
        curC, nxtC = bool(cpx and ct == 'C'), bool(cpx and nt == 'C')
        if not curC:
            for i in range(8): put(2 * i, self.exp(cb, 8 + i))
        def c_softmax():
            if curC: e0 = o.get('ce0c', 10); pos = list(range(e0, e0 + 16))
            else: pos = o.get('cepos', [11, 13, 15] + list(range(16, 29)))
            if cm2:
                pos = list(o.get('cepos2c' if curC else 'cepos2', range(10, 26) if curC else range(16, 32)))
            for r in range(16): put(pos[r], self.exp(nb, r))
            for q in range(2):
                g = 0
                for k in range(4):
                    lo = pos[8 * q + 2 * k + 1] + 1
                    if cm2: g = place(self.cvt(nb, q, k), max(g, lo), min(lo + o.get('ccw', 2), G - 2))
                    else: put(lo, self.cvt(nb, q, k))
                pw = self.pwrite(nxt[1], nb, q)
                if q == 1: pw.m['lg'] = f'PW{nxt[1]}'
                if cm2: place(pw, min(g + 1, G - 1), min(g + 1 + o.get('pww', 3), G - 1))
                else: put(min(pos[8 * q + 7] + 2, G - 1), pw)
        c2 = cpx == 2
        def c_softmax2():
            Hl = o.get('celastb', {}).get(bi - self.off, o.get('celast', 30)); g = -1; pos = []
            for r in range(16):
                lo = max(g + 1, o.get('ce0', 10) if r < 8 else o.get('ce1', 18))
                g = place(self.exp(nb, r), lo, max(lo, Hl - (15 - r))); pos.append(g)
            for q in range(2):
                g = 0
                for k in range(4):
                    lo = pos[8 * q + 2 * k + 1] + 1
                    g = place(self.cvt(nb, q, k), max(g, lo), min(max(g, lo) + o.get('ccw', 2), G - 2))
                pw = self.pwrite(nxt[1], nb, q)
                if q == 1: pw.m['lg'] = f'PW{nxt[1]}'
                place(pw, min(g + 1, G - 1), min(g + 1 + o.get('pww', 3), G - 1))
        if nxtC:
            for x in self.paddr(nxt[1]): put(o.get('pwg', 0), x)
            if not c2: c_softmax()
        else:
            for i in range(8): put(16 + 2 * i, self.exp(nb, i))
        scur, snxt = self.src_of(cur), self.src_of(nxt)
        vhi = kr = vlo = []
        vall = prev_cur == 'FIRST'
        if vall: vhi = [self.vread(scur, dt, e) for dt in range(8) for e in range(2)]
        elif prev_cur is not None and self.src_of(prev_cur) != scur:
            vhi = [self.vread(scur, dt, e) for dt in range(4, 8) for e in range(2)]
        if nn is not None and self.src_of(nn) != snxt:
            kr = [self.kread(self.src_of(nn), i) for i in range(8)]
        if snxt != scur:
            vlo = [self.vread(snxt, dt, e) for dt in range(4) for e in range(2)]
        if c2 and nxtC and not curC: vlo = []
        if c2 and curC: vhi = [self.vread(scur, dt, e) for dt in range(8) for e in range(2)]
        if nn is not None and nn[0] == 'C' and nn[1] > 0:
            place(X(f'v_add_u32 v{vKc}, s{sCo+nn[1]}, v{vK[0]}'), 1, 7)
        vh0 = 1
        needv = []
        for x in vhi:
            for tg in x.m.get('rd', []):
                if tg not in self.pub and tg not in needv: needv.append(tg)
        if needv:
            vb = o.get('vbar0', 5)
            for tg in needv:
                assert tg in self.issued, ('not issued', bi, tg)
                self.pub.add(tg)
            put(vb, self.waitvm(needv)); put(vb, self.barrier()); vh0 = vb + 1
        need = []
        for x in kr + vlo:
            for tg in x.m.get('rd', []):
                if tg[0] in 'KV' and tg not in self.pub and tg not in need: need.append(tg)
        def unpub(l): return any(tg in need for x in l for tg in x.m.get('rd', []))
        firstg = 9 if unpub(kr) else (17 + NP if unpub(vlo) else G)
        bg = None
        forced = bi in self.forcebar
        if need or forced:
            bg = min(o.get('bargap', 7), firstg - 1)
            if curC: bg = min(bg, o.get('pbar', 5))
            if bi - self.off < o.get('lateblk', 0) and not forced:
                bg = o.get('latek', 17) if unpub(kr) else firstg - 1
            assert bg >= 0, (bi, need)
            if bg % 2 == 0: bg -= 1
            self.bg_of[bi] = bg
            cover = list(need)
            for tg in need:
                if tg[0] == 'K':
                    v = ('V', tg[1])
                    if v in self.issued and v not in self.pub and v not in cover and self.issued[v] <= bi - o.get('vlead', 3): cover.append(v)
            for tg in cover:
                assert tg in self.issued, ('not issued', bi, tg)
                self.pub.add(tg)
            for x in self.prebar.get(bi, []): put(bg, x)
            if cover: put(bg, self.waitvm(cover))
            put(bg, self.barrier())
        def place_dma():
            glo = 1
            for ii, (g0, kind, j) in enumerate(dmas):
                su, d = self.tile_dma(kind, j, tab=True)
                rem = len(dmas) - 1 - ii
                g = place(su[0], max(glo, g0), G - 5 - 6 * rem)
                g = place(d[0], g + (0 if cm2 else 1), G - 3 - 6 * rem)
                g = place(d[1], min(g + o.get('dspace', 2), G - 1), G - 1 - 6 * rem)
                glo = g
                self.issued[(kind, j)] = bi
        if cm2 and o.get('dmafirst', True): place_dma()
        if curC and not c2 and self.vwin(cur[1], 1) != self.vcur:
            self.vcur = self.vwin(cur[1], 1)
            for x in self.vwin_set(self.vcur): put(0, x)
        if c2 and curC:
            place_seq(vhi[:8], lambda i: 0, o.get('cvlo', 8))
            glastv = place_seq(vhi[8:], lambda i: 0, o.get('cvhi', 13))
            glastv = max(g for g in range(G) if any(x in vhi for x in fill[g]))
        else: glastv = place_seq(vhi, lambda i: vh0, 19 if vall else 13)
        if curC:
            assert bg is not None
            for x in self.paddr_r(cur[1]): put(1, x)
            pr = [self.pread(cur[1], t, q) for q in range(2) for t in range(4)]
            place_seq(pr, lambda i: bg + 1, o.get('prhi', 17))
        if not curC: place_seq(sum([self.cvts(ct, cb, 0, k) for k in range(4)], []), lambda i: 1, 14)
        if ct == 'C' and cur[1] < 3 and not cpx:
            place_seq([X(f'v_add_u32 v{vVc0}, s{sCo + cur[1] + 1}, v{vV0[0]}'), X(f'v_add_u32 v{vVc1}, s{sCo + cur[1] + 1}, v{vV1[0]}')], lambda i: glastv + 1, 16 + NP)
        if nxtC and c2:
            place_seq(self.vwin_upd(nxt[1]), lambda i: (glastv + 1) if curC else 1, 24)
        elif nxtC and self.vwin(nxt[1], 0) != self.vcur:
            self.vcur = self.vwin(nxt[1], 0)
            place_seq(self.vwin_set(self.vcur), lambda i: (glastv + 1) if curC else 1, 16 + NP)
        cpk = 2 if self.vsum else 1
        if not curC: place_seq(sum([self.cvts(ct, cb, 1, k) for k in range(4)], []), lambda i: 4 * (i // cpk) + 3, 14 + NP)
        if o.get('qkord') and kr:
            kr = [kr[i] for i in (0, 4, 1, 5, 2, 6, 3, 7)]
            k0 = o.get('kr0', 4)
            place_seq(kr, lambda i: max(4 * (i >> 1) + 4, k0 + i, (bg + 1) if (bg is not None and unpub([kr[i]])) else 0), o.get('krhi', 27))
        else:
            place_seq(kr, lambda i: max(9 + i, (bg + 1) if (bg is not None and unpub([kr[i]])) else 0), o.get('krhi', 27))
        place_seq(vlo, lambda i: 17 + NP + (i >> 1), G - 1)
        if not (cm2 and o.get('dmafirst', True)): place_dma()
        if nxtC and c2: c_softmax2()
        xcap = o.get('xcap', 12)
        if bi - self.off < 8: xcap = o.get('xcap_qc', xcap)
        elif bi - self.off < self.bA: xcap = o.get('xcap_mid', 8)
        xcap = o.get('xcapb', {}).get(bi - self.off, xcap)
        tcap = o.get('tcap', 20)
        if bi - self.off < 8: tcap = o.get('tcap_qc', 20)
        elif bi - self.off < self.bA: tcap = o.get('tcap_mid', 16)
        tcap = o.get('tcapb', {}).get(bi - self.off, tcap)
        main = dict(items=list(extras), hold=getattr(self, 'xhold', 0), name='main', prio=5)
        for st_ in self.aux: st_['items'] += self.auxsched.get(st_['name'], {}).get(bi - self.off, [])
        allst = sorted(self.aux + [main], key=lambda z: z['prio'])
        for g in range(G):
            gg = (bi - self.off) * G + g
            for st_ in allst:
                if st_['hold'] > 0:
                    st_['hold'] -= 1; continue
                ex = st_['items']
                while ex:
                    it = ex[0]
                    if it.m.get('minblk') is not None and (bi - self.off, g) < it.m['minblk']: break
                    if it.m.get('minblk') is None and g < 2 * it.m.get('ming', 0): break
                    if it.m.get('afterbar') is not None and (bi < it.m['afterbar'] or (bi == it.m['afterbar'] and g <= self.bg_of[bi])): break
                    af = it.m.get('after')
                    if af is not None and (af[0].m.get('gg') is None or gg < af[0].m['gg'] + af[1]): break
                    c = 0 if it.t.startswith('s_') else cost(it)
                    if cm2:
                        t0 = gapT(bubble(fill[g])); t1 = gapT(bubble(fill[g] + [it]))
                        if t1 > max(t0, tcap + it.m.get('slack', 0)) and not (it.m.get('force') or (t1 - t0 > 8 and t0 <= o.get('tbig', 16) and not any(is_valu(y) for y in fill[g]))): break
                    elif load[g] + c > st_.get('cap', xcap) and not it.m.get('force'): break
                    put(g, it); ex.pop(0); it.m['gg'] = gg
                    if it.m.get('space'): st_['hold'] = 2 * it.m['space']
                    if it.m.get('hold'): st_['hold'] = it.m['hold']
                    if it.m.get('solo') or it.m.get('space') or it.m.get('hold'): break
        ex = main['items']
        self.xhold = main['hold']
        out = []
        for g in range(G):
            out.append(self.mfma_qk(nt, nb, g, NEG[nt]) if g < 16 else self.mfma_pv(ct, cb, g - 16, first_pv))
            out += bubble(fill[g]) if (cm2 or o.get('bub')) else fill[g]
        if o.get('verbose'): print('blk', bi - self.off, 'model T', sum(gapT(bubble(f)) for f in fill), [gapT(bubble(f)) for f in fill])
        return out, ex

    def epi_pre(self, tile, rc):
        l = LL[tile]
        out = []
        if self.vsum:
            for q in range(2): out += self.lreduce(tile, q, rc + q)
        for q in range(2):
            out += [X(f'v_cmp_gt_f32 vcc, s{sThr}, v{l+4*q}', solo=True), X(f'v_rcp_f32 v{rc+q}, v{l+4*q}', solo=True),
                    X(f'v_cndmask_b32 v{vBad}, v{eINF}, v{vBad}, vcc', solo=True)]
        return out
    def epi_tile(self, tile, rc, pkfrom=99, land=None):
        O = OO[tile]
        st = self.opt.get('stflag', 'nt'); st = f' {st}' if st else ''
        if self.opt.get('epi' + tile, self.opt.get('epi')) == 'swap': return self.epi_swap(tile, rc)
        cw = []
        for q in range(2):
            for dt in range(8):
                r = O + 32 * q + 4 * dt
                if 8 * q + dt >= pkfrom: cw += [self.pkmul(r, rc + q), self.pkmul(r + 2, rc + q)]
                else:
                    for i in range(4): cw.append(X(f'v_mul_f32 v{r+i}, v{r+i}, v{rc+q}'))
                cw.append(X(f'v_cvt_pk_bf16_f32 v{r}, v{r}, v{r+1}'))
                cw.append(X(f'v_cvt_pk_bf16_f32 v{r+1}, v{r+2}, v{r+3}'))
                if self.opt.get('sw16'):
                    off = q * 4096
                    cw.append(X(f'ds_write_b64 v{(eWB if dt >> 2 else eWA) + (dt & 3)}, {vr(r,2)}' + (f' offset:{off}' if off else '')))
                    continue
                off = (dt >> 2) * 128 + q * 4096
                cw.append(X(f'ds_write_b64 v{eWA + (dt & 3)}, {vr(r,2)}' + (f' offset:{off}' if off else '')))
        LR = (lambda i: ar(land + 4*i, 4)) if land is not None else (lambda i: vr(O + 4*i, 4))
        rd = [X(f'ds_read_b128 {LR(i)}, v{eSRX[i & 3] if self.opt.get("sw16") else eSR + (i & 1)}' + (f' offset:{i*1024}' if i else '')) for i in range(8)]
        toff = 8192 if tile == 'B' else 0
        sts = []
        for i in range(8):
            if i % 4 == 0:
                k = toff + (i >> 2) * 4096
                sts.append(X(f's_add_u32 s{sE1}, s{sW16k}, {k}') if k else X(f's_mov_b32 s{sE1}, s{sW16k}'))
            off = f' offset:{(i & 3) * 1024}' if i & 3 else ''
            sts.append(X(f'buffer_store_dwordx4 {LR(i)}, v{eSO}, {sr(sO,4)}, s{sE1} offen{off}{st}', st=True))
        return cw, rd, sts
    def pkmul(self, r, rc):
        if rc & 1: return X(f'v_pk_mul_f32 {vr(r,2)}, {vr(r,2)}, {vr(rc-1,2)} op_sel:[0,1] op_sel_hi:[1,1]')
        return X(f'v_pk_mul_f32 {vr(r,2)}, {vr(r,2)}, {vr(rc,2)} op_sel:[0,0] op_sel_hi:[1,0]')
    def epi_pair(self, tile, rc, q, m, pk=False):
        st = self.opt.get('stflag', 'nt'); st = f' {st}' if st else ''
        r = OO[tile] + 32 * q + 8 * m
        v = []
        if pk: v += [self.pkmul(r + 2 * i, rc + q) for i in range(4)]
        else: v += [X(f'v_mul_f32 v{r+i}, v{r+i}, v{rc+q}') for i in range(8)]
        v += [X(f'v_cvt_pk_bf16_f32 v{r+i}, v{r+2*i}, v{r+2*i+1}') for i in range(4)]
        sw = [X(f'v_permlane16_swap_b32 v{r}, v{r+2}'), X(f'v_permlane16_swap_b32 v{r+1}, v{r+3}')]
        s = []
        if m == 0:
            k = (8192 if tile == 'B' else 0) + q * 4096
            s.append(X(f's_add_u32 s{sE1}, s{sW16k}, {k}') if k else X(f's_mov_b32 s{sE1}, s{sW16k}'))
        off = f' offset:{64 * m}' if m else ''
        s.append(X(f'buffer_store_dwordx4 {vr(r, 4)}, v{cWe if self.opt.get("cpx") else eSR}, {sr(sO,4)}, s{sE1} offen{off}{st}', st=True))
        return v, sw, s
    def epi_stream(self, tile, rc, pairs, pk=False):
        out = []; psw = []; ps = []
        for (q, m) in pairs:
            v, sw, s = self.epi_pair(tile, rc, q, m, pk)
            n = len(v) - 4
            h = n // 2
            out += v[:2] + psw + v[2:h] + ps + v[h:]
            psw, ps = sw, s
        out += [X('s_nop 1')] + psw + ps
        return out
    def epi_stream2(self, tile, rc, pairs, pkl):
        stf = self.opt.get('stflag', 'nt'); stf = f' {stf}' if stf else ''
        out = []; psw = []
        for (q, m), pk in zip(pairs, pkl):
            v, sw, _ = self.epi_pair(tile, rc, q, m, pk)
            n = len(v) - 4; h = n // 2
            out += v[:2] + psw + v[2:]
            k = (2 if tile == 'B' else 0) + q
            so = f's{sW16k}' if k == 0 else f's{sSO + k - 1}'
            r = OO[tile] + 32 * q + 8 * m
            off = f' offset:{64 * m}' if m else ''
            stx = X(f'buffer_store_dwordx4 {vr(r, 4)}, v{cWe}, {sr(sO,4)}, {so} offen{off}{stf}', st=True, after=(sw[1], 1))
            psw = sw + [stx]
        out += [X('s_nop 1')] + psw
        return out
    def epi_stream3(self, tile, rc):
        stf = self.opt.get('stflag', 'nt'); stf = f' {stf}' if stf else ''
        nb_ = self.opt.get('pkbn', 16)
        out = []
        for q in range(2):
            pk = [self.pkmul(OO[tile] + 32 * q + 2 * i, rc + q) for i in range(16)]
            for i, x in enumerate(pk):
                if i % nb_: x.m['force'] = True
            psw = []
            k = (2 if tile == 'B' else 0) + q
            so = f's{sW16k}' if k == 0 else f's{sSO + k - 1}'
            for m in range(4):
                if (4 * m) % nb_ == 0: out += pk[4 * m: 4 * m + nb_]
                r = OO[tile] + 32 * q + 8 * m
                cv = [X(f'v_cvt_pk_bf16_f32 v{r+i}, v{r+2*i}, v{r+2*i+1}') for i in range(4)]
                out += cv[:2] + psw + cv[2:]
                sw = [X(f'v_permlane16_swap_b32 v{r}, v{r+2}'), X(f'v_permlane16_swap_b32 v{r+1}, v{r+3}')]
                off = f' offset:{64 * m}' if m else ''
                stx = X(f'buffer_store_dwordx4 {vr(r, 4)}, v{cWe}, {sr(sO,4)}, {so} offen{off}{stf}', st=True, after=(sw[1], 1))
                psw = sw + [stx]
            out += [X('s_nop 1')] + psw
        return out
    def epi_swap(self, tile, rc):
        return self.epi_stream(tile, rc, [(q, m) for q in range(2) for m in range(4)]), [], []
    def epi_addr(self):
        t = eT
        if self.opt.get('epi') == 'swap':
            return [X(f'v_and_b32 v{t}, 15, v{vLane}'), X(f'v_lshlrev_b32 v{eSR}, 8, v{t}'),
                    X(f'v_bfe_u32 v{t}, v{vLane}, 4, 1'), X(f'v_lshl_add_u32 v{eSR}, v{t}, 5, v{eSR}'),
                    X(f'v_lshrrev_b32 v{t}, 5, v{vLane}'), X(f'v_lshl_add_u32 v{eSR}, v{t}, 4, v{eSR}'),
                    X(f'v_lshlrev_b32 v{eSO}, 4, v{vLane}'),
                    X(f'v_mov_b32 v{eINF}, 0x7f800000')]
        if self.opt.get('sw16'):
            assert self.opt.get('cpx') == 2
            out = [X(f'v_and_b32 v{t}, 15, v{vLane}'), X(f'v_lshrrev_b32 v{t+1}, 5, v{vLane}'),
                   X(f's_lshl_b32 s{sE1}, s{sW}, 13'), X(f's_add_u32 s{sE1}, s{sE1}, {STG}'),
                   X(f'v_lshlrev_b32 v{eWA}, 8, v{t}'), X(f'v_xor_b32 v{t+1}, v{t+1}, v{t}'),
                   X(f'v_lshl_add_u32 v{eWA}, v{t+1}, 4, v{eWA}'),
                   X(f'v_bfe_u32 v{t+1}, v{vLane}, 4, 1'), X(f'v_lshl_add_u32 v{eWA}, v{t+1}, 3, v{eWA}'),
                   X(f'v_add_u32 v{eWA}, s{sE1}, v{eWA}')]
            out += [X(f'v_xor_b32 v{eWA + k}, {k << 5}, v{eWA}') for k in range(1, 4)]
            out += [X(f'v_xor_b32 v{eWB + k}, {128 | (k << 5)}, v{eWA}') for k in range(4)]
            out += [X(f'v_lshrrev_b32 v{t+1}, 4, v{vLane}'), X(f'v_xor_b32 v{t}, v{t}, v{t+1}'),
                    X(f'v_lshlrev_b32 v{eSR}, 8, v{t+1}'), X(f'v_lshl_add_u32 v{eSR}, v{t}, 4, v{eSR}'),
                    X(f'v_add_u32 v{eSR}, s{sE1}, v{eSR}')]
            out += [X(f'v_xor_b32 v{eSRX[k]}, {64 * k}, v{eSR}') for k in range(1, 4)]
            out += [X(f'v_lshlrev_b32 v{eSO}, 4, v{vLane}'), X(f'v_mov_b32 v{eINF}, 0x7f800000')]
            return out
        out = [X(f'v_and_b32 v{t}, 15, v{vLane}'), X(f'v_lshrrev_b32 v{t+1}, 5, v{vLane}'),
               X(f's_lshl_b32 s{sE1}, s{sW}, 13'), X(f's_add_u32 s{sE1}, s{sE1}, {STG}'),
               X(f'v_lshlrev_b32 v{eWA}, 8, v{t}'),
               X(f'v_and_b32 v{t}, 7, v{vLane}'), X(f'v_xor_b32 v{t+1}, v{t+1}, v{t}'),
               X(f'v_lshl_add_u32 v{eWA}, v{t+1}, 4, v{eWA}'),
               X(f'v_bfe_u32 v{t+1}, v{vLane}, 4, 1'), X(f'v_lshl_add_u32 v{eWA}, v{t+1}, 3, v{eWA}'),
               X(f'v_add_u32 v{eWA}, s{sE1}, v{eWA}')]
        out += [X(f'v_xor_b32 v{eWA + k}, {k << 5}, v{eWA}') for k in range(1, 4)]
        out += [X(f'v_lshrrev_b32 v{t+1}, 4, v{vLane}'), X(f'v_xor_b32 v{t}, v{t}, v{t+1}'),
                X(f'v_lshlrev_b32 v{eSR}, 8, v{t+1}'), X(f'v_lshl_add_u32 v{eSR}, v{t}, 4, v{eSR}'),
                X(f'v_bfe_u32 v{t}, v{vLane}, 3, 1'), X(f'v_lshl_add_u32 v{eSR}, v{t}, 7, v{eSR}'),
                X(f'v_add_u32 v{eSR}, s{sE1}, v{eSR}'), X(f'v_xor_b32 v{eSR + 1}, 64, v{eSR}'),
                X(f'v_lshlrev_b32 v{eSO}, 4, v{vLane}'),
                X(f'v_mov_b32 v{eINF}, 0x7f800000')]
        return out

    def mix(self, mf, fl):
        n = len(mf)
        k = 0
        for i, m in enumerate(mf):
            self(m)
            upto = (len(fl) * (i + 1) + n - 1) // n
            while k < upto:
                self(fl[k]); k += 1

    def build(self):
        o = self.opt; a = self; F = self.F
        self.pub = set(); self.issued = {}
        self.lin = True
        a('s_cmp_ge_u32 s2, 256')
        a('s_cbranch_scc1 L_end')
        a('s_load_dwordx4 s[4:7], s[0:1], 0')
        a('s_load_dwordx4 s[8:11], s[0:1], 16')
        hd = 's2'
        hm = o.get('hmap')
        if hm:
            hd = 's3'
            if hm[0] == 'xor': a(f's_xor_b32 s3, s2, {hm[1]}')
            elif hm[0] == 'rot':
                a('s_and_b32 s3, s2, 7'); a('s_lshl_b32 s3, s3, 5'); a('s_lshr_b32 s28, s2, 3'); a('s_or_b32 s3, s3, s28')
            elif hm[0] == 'rot16':
                a('s_and_b32 s3, s2, 6'); a('s_lshl_b32 s3, s3, 5'); a('s_lshr_b32 s28, s2, 3'); a('s_lshl_b32 s28, s28, 1'); a('s_or_b32 s3, s3, s28')
                a('s_and_b32 s28, s2, 1'); a('s_or_b32 s3, s3, s28')
            elif hm[0] == 'add': a(f's_add_u32 s3, s2, {hm[1]}'); a('s_and_b32 s3, s3, 255')
        if o.get('stamps'):
            a(f's_load_dwordx2 s[54:55], s[0:1], {32 if o.get("stamps") == "dbg" else 40}')
            a(f'v_mov_b32 v{vST}, 0')
            self.stamp(0); self.stamp(1, real=True)
            if o.get('xcc'):
                a('s_getreg_b32 s50, hwreg(HW_REG_XCC_ID)'); a('s_or_b32 s50, s50, 0x100'); a('s_nop 1'); a(f'v_writelane_b32 v{vST}, s50, 60')
        a(f'v_and_b32 v{vLane}, 63, v0')
        a(f'v_lshrrev_b32 v{T}, 6, v0')
        for t in 'ABC':
            for q in range(2): a(f'v_mov_b32 v{MM[t]+q}, 0xff800000')
        a(f'v_readfirstlane_b32 s{sW}, v{T}')
        a(f's_mov_b32 s{sPass}, 0')
        a.label('L_RESTART')
        a(f'v_bfe_u32 v{pT}, v{vLane}, 2, 2')
        a(f'v_lshlrev_b32 v{pT}, 8, v{pT}')
        a(f'v_lshrrev_b32 v{pT+1}, 4, v{vLane}')
        a(f'v_lshl_add_u32 v{pT}, v{pT+1}, 6, v{pT}')
        a(f'v_and_b32 v{pT+1}, 3, v{vLane}')
        a(f's_lshl_b32 s{sW2k}, s{sW}, 11')
        a(f's_lshl_b32 s{sT1}, s{sW}, 1')
        a(f's_and_b32 s{sT1}, s{sT1}, 3')
        a(f's_xor_b32 s{sT2}, s{sT1}, 3')
        a(f's_lshl_b32 s{sW16k}, s{sW}, 14')
        a(f'v_xor_b32 v{pT+2}, s{sT1}, v{pT+1}')
        a(f'v_lshl_add_u32 v{vDKa}, v{pT+2}, 4, v{pT}')
        a(f'v_add_u32 v{vDKa}, s{sW2k}, v{vDKa}')
        a(f'v_xor_b32 v{pT+2}, s{sT2}, v{pT+1}')
        a(f'v_lshl_add_u32 v{vDKb}, v{pT+2}, 4, v{pT}')
        a(f'v_add_u32 v{vDKb}, s{sW2k}, v{vDKb}')
        for x in range(4):
            a(f'v_xor_b32 v{pT+2}, {x}, v{pT+1}')
            a(f'v_lshl_add_u32 v{pQ+x}, v{pT+2}, 4, v{pT}')
        a(f'v_add_u32 v{vDVa}, s{sW2k}, v{pQ}')
        a(f'v_add_u32 v{vDVb}, s{sW2k}, v{pQ+2}')
        a('s_waitcnt lgkmcnt(0)')
        D = []
        def tile(kind, j):
            su, d = self.tile_dma(kind, j)
            D.append(su + [d[0]]); D.append([d[1]])
            self.issued[(kind, j)] = -1
        def qtile(t):
            base = 8192 if t == 'B' else 0
            for b in range(8):
                l = []
                if b % 4 == 0:
                    l += [X(f's_add_u32 m0, s{sW16k}, {QSTG + base + (b >> 2) * 4096}'),
                          X(f's_add_u32 s{sQo}, s{sW16k}, {base + (b >> 2) * 4096}') if (base or b) else X(f's_mov_b32 s{sQo}, s{sW16k}')]
                l.append(self.dma(pQ + ((-b) & 3), sQ, f's{sQo}', (b & 3) * 1024, ('Q' + t, b)))
                D.append(l)
        qtile('A'); tile('K', 0); qtile('B'); tile('V', 0)
        ptiles = o.get('ptiles', [('K', 1), ('V', 1), ('K', 2), ('V', 2), ('K', 3)])
        for kj in ptiles: tile(*kj)
        nD = [0]
        def issue(n):
            for _ in range(n):
                if nD[0] < len(D):
                    for x in D[nD[0]]: a(x)
                    nD[0] += 1
        a(f's_mul_i32 s{sT3}, {hd}, 73728')
        a(f's_add_u32 s{sQ}, s4, s{sT3}'); a(f's_addc_u32 s{sQ+1}, s5, 0'); a(f's_mov_b32 s{sQ+2}, 73728'); a(f's_mov_b32 s{sQ+3}, 0x20000')
        issue(8)
        kr_ = o.get('krot')
        if kr_ == 1: a(f's_and_b32 s81, {hd}, 15')
        elif kr_ == 2: a(f's_lshr_b32 s81, {hd}, 3'); a('s_and_b32 s81, s81, 15')
        elif kr_ == 3: a(f's_lshr_b32 s81, {hd}, 4'); a(f's_add_u32 s81, s81, {hd}'); a('s_and_b32 s81, s81, 15')
        if kr_: a('s_lshl_b32 s81, s81, 13')
        a(f's_lshl_b32 s{sT2}, {hd}, 17')
        a(f's_add_u32 s{sK}, s6, s{sT2}'); a(f's_addc_u32 s{sK+1}, s7, 0'); a(f's_mov_b32 s{sK+2}, 131072'); a(f's_mov_b32 s{sK+3}, 0x20000')
        iss = o.get('iss', (4, 4, 4, 2, 4, 2, 2))
        issue(iss[0])
        self.stamp(2)
        a(f's_add_u32 s{sV}, s8, s{sT2}'); a(f's_addc_u32 s{sV+1}, s9, 0'); a(f's_mov_b32 s{sV+2}, 131072'); a(f's_mov_b32 s{sV+3}, 0x20000')
        a(f's_add_u32 s{sO}, s10, s{sT3}'); a(f's_addc_u32 s{sO+1}, s11, 0'); a(f's_mov_b32 s{sO+2}, 73728'); a(f's_mov_b32 s{sO+3}, 0x20000')
        a(f'v_bfe_u32 v{pT+2}, v{vLane}, 2, 2')
        a(f'v_lshrrev_b32 v{pT+1}, 4, v{vLane}')
        k0 = vK[0]
        a(f'v_lshlrev_b32 v{k0}, 10, v{pT+2}')
        a(f'v_and_b32 v{pT+3}, 3, v{vLane}')
        a(f'v_lshl_add_u32 v{k0}, v{pT+3}, 6, v{k0}')
        a(f'v_sub_u32 v{pT}, 0, v{pT+2}')
        a(f'v_and_b32 v{pT}, 3, v{pT}')
        a(f'v_xor_b32 v{pT}, v{pT+1}, v{pT}')
        a(f'v_lshl_add_u32 v{k0}, v{pT}, 4, v{k0}')
        v0 = vV0[0]
        a(f'v_lshlrev_b32 v{v0}, 10, v{pT+1}')
        a(f'v_lshl_add_u32 v{v0}, v{pT+2}, 6, v{v0}')
        a(f'v_and_b32 v{pT}, 1, v{pT+1}')
        a(f'v_lshl_add_u32 v{v0}, v{pT}, 5, v{v0}')
        a(f'v_lshl_add_u32 v{v0}, v{pT+3}, 3, v{v0}')
        a(f'v_xor_b32 v{vV1[0]}, 32, v{v0}')
        for wdw in (1, 2):
            a(f'v_add_u32 v{vK[wdw]}, {wdw * 65536}, v{k0}')
            a(f'v_add_u32 v{vV0[wdw]}, {wdw * 65536}, v{v0}')
            a(f'v_add_u32 v{vV1[wdw]}, {wdw * 65536}, v{vV1[0]}')
        if o.get('krot'):
            a('s_mov_b32 s80, 65536')
            for j in range(3, 16): a(f's_add_u32 s{sTab + j}, s81, {j * 8192}'); a(f's_and_b32 s{sTab + j}, s{sTab + j}, 0x1ffff')
        else:
            for j in range(3, 16): a(f's_mov_b32 s{sTab + j}, {j * 8192}')
        a(f'v_mov_b32 v{pT}, 0x3f803f80')
        a(f'v_mov_b32 v{vBad}, 0')
        for r in range(4): a(f'v_accvgpr_write_b32 a{aONE + r}, v{pT}')
        cval = f2u(math.log2(math.e) / math.sqrt(128.0))
        a(f's_mov_b32 s{sC}, {cval:#x}'); a(f's_mov_b32 s{sC+1}, {cval:#x}')
        a(f's_mov_b32 s{sMask}, 0xffff0000')
        a(f's_mov_b32 s{sThr}, {f2u(2.0**32):#x}')
        a(f's_mov_b32 s{sLo}, {f2u(2.0**-24):#x}')
        a(f's_mov_b32 s{sRng}, {f2u(2.0**32) - f2u(2.0**-24):#x}')
        for i in range(4):
            lo = (4 * i) % R
            a(f's_add_u32 s{sCo+i}, s{sW16k}, {lo * 16384}')
            if lo + 3 >= R:
                a(f's_cmp_ge_u32 s{sCo+i}, {R * 16384}')
                a(f's_cselect_b32 s{sT1}, {R * 16384}, 0')
                a(f's_sub_u32 s{sCo+i}, s{sCo+i}, s{sT1}')
        a(f'v_add_u32 v{vKc}, s{sCo}, v{k0}')
        if o.get('cpx'):
            a(f's_lshl_b32 s{sWV}, s{sW}, 8')
            for x in self.vwin_set(0): a(x)
            self.vcur = 0; self.vcurh = None
        else:
            a(f'v_add_u32 v{vVc0}, s{sCo}, v{v0}')
            a(f'v_add_u32 v{vVc1}, s{sCo}, v{vV1[0]}')
        a(f'v_lshlrev_b32 v{pT}, 4, v{vLane}')
        a(f's_add_u32 s{sT3}, s{sW16k}, {QSTG}')
        a(f'v_add_u32 v{pQf}, s{sT3}, v{k0}')
        a(f's_add_u32 s{sT1}, s{sW2k}, {QSTG + 65536}')
        a(f'v_add_u32 v{lQc}, s{sT1}, v{pT}')
        a(f'v_add_u32 v{lCf}, {QSTG + 65536}, v{k0}')
        a(f'v_lshlrev_b32 v{lMr}, 2, v{vLane}')
        a(f'v_add_u32 v{pQc}, s{sT3}, v{lMr}')
        a(f'v_add_u32 v{lMr}, {QSTG}, v{lMr}')
        SA0, SB0 = SBUF[0], SBUF[1]
        tS = [96, 104]
        qA, qB = 0, 32
        if o.get('touch'): a(X('TOUCH_ENTRY', comment=True, touch_entry=True))
        self.stamp(48)
        for q in range(2):
            a(self.waitvm([('QA', 4 * q + 3)]))
            self.stamp(49 + q)
            for x in self.qraw('A', q, pQf, qA + 16 * q): a(x)
            issue(iss[1 + q])
            for ks in range(4):
                for x in self.qscale('A', q, ks, qA + 16 * q + 4 * ks, tS[ks & 1]): a(x)
        a(self.waitvm([('K', 0)])); self.stamp(51)
        a(self.barrier()); self.pub.add(('K', 0))
        for t in range(8): a(self.kread(('p', 0), t))
        issue(iss[3])
        for t in range(16): a(self.mfma_qk('A', SA0, t, '0'))
        for x in self.maxtree('A', SA0): a(x)
        for x in self.finish_max('A', pT): a(x)
        a(f'ds_write_b32 v{pQc}, v{MM["A"]}')
        a(f'ds_write_b32 v{pQc}, v{MM["A"]+1} offset:256')
        for x in self.addneg('A', SA0): a(x)
        for x in self.smq(SA0, 0, tile='A') + self.smq(SA0, 1, tile='A'): a(x)
        def qb_half(q):
            for x in self.qraw('B', q, pQf, qB + 16 * q): a(x)
            issue(iss[4 + q])
            pend = []
            for ks in range(4):
                w = self.qscale('B', q, ks, qB + 16 * q + 4 * ks, tS[ks & 1], pk=o.get('qbpk', False))
                h = len(w) // 3
                for x in w[:h]: a(x)
                if pend: a(pend[0])
                for x in w[h:2 * h]: a(x)
                if pend: a(pend[1])
                for x in w[2 * h:]: a(x)
                pend = [self.mfma_qk('B', SB0, 8 * q + ks, '0'), self.mfma_qk('B', SB0, 8 * q + 4 + ks, '0')]
            for x in pend: a(x)
        a(self.waitvm([('QB', 3)]))
        qb_half(0)
        for x in self.maxtree_q('B', SB0, 0) + self.finish_max_q('B', 0, pT) + self.addneg_q('B', SB0, 0) + self.smq(SB0, 0, tile='B'): a(x)
        a(self.waitvm([('QB', 7)])); self.stamp(52)
        qb_half(1)
        a(self.waitvm([('V', 0)])); self.stamp(3)
        a(self.barrier()); self.pub.add(('V', 0))
        for dt in range(8):
            for e in range(2): a(self.vread(('p', 0), dt, e))
        a(X(f'ds_read_b32 v{lMd}, v{lMr}', rd=[('QA',)]))
        a(X(f'ds_read_b32 v{lMd+1}, v{lMr} offset:256', rd=[('QA',)]))
        issue(iss[6])
        for x in self.maxtree_q('B', SB0, 1) + self.finish_max_q('B', 1, pT): a(x)
        NP = self.NP
        pvA = [self.mfma_pv('A', SA0, k, True) for k in range(2 * NP)]
        pvB = [self.mfma_pv('B', SB0, k, True) for k in range(2 * NP)]
        capp = [X(f's_cmp_eq_u32 s{sPass}, 0'), X('s_cselect_b64 vcc, -1, 0')] + \
               [X(f'v_cndmask_b32 v{MM["C"]+q}, v{MM["C"]+q}, v{lMd+q}, vcc') for q in range(2)] + \
               [x for x in self.finish_max('C', lMd) if not x.t.startswith('s_nop')]
        self.mix(pvA, self.addneg_q('B', SB0, 1) + self.smq(SB0, 1, tile='B'))
        kb = o.get('k1at', 10)
        self.stamp(61)
        self.mix(pvB[:kb], capp)
        self.stamp(62)
        a(self.waitvm([('K', 1)])); self.stamp(63); a(self.barrier()); self.pub.add(('K', 1))
        for t in range(8): a(self.kread(('p', 1), t))
        issue(len(D))
        for x in pvB[kb:]: a(x)
        qk1 = [self.mfma_qk('A', SA0, t, NEG['A']) for t in range(16)]
        for x in qk1[:10]: a(x)
        self.mix(qk1[10:], self.smq(SA0, 0, cv=False)[:6])
        for x in self.smq(SA0, 0, cv=False)[6:]: a(x)
        a.label('L_GO')
        self.lin = False
        self.stamp(4); self.stamp(37, real=True)
        items = []
        cpos = o.get('cpos', (4, 7))
        for j in range(F):
            items += [('A', j), ('B', j)]
            if j == cpos[0]: items.append(('C', 0))
            if j == cpos[1]: items.append(('C', 1))
        end2 = o.get('end2', True)
        if end2:
            es = o.get('endseq') or (['C2'] + [f'A{j}' for j in range(F, 16)] + ['C3'] + [f'B{j}' for j in range(F, 16)])
            if o.get('cpx'): es = o.get('endseq') or ([f'A{j}' for j in range(F, 16)] + [f'B{j}' for j in range(F, 16)] + ['C2', 'C3'])
            items += [(e[0], int(e[1:])) for e in es]
            assert sorted(items) == sorted([(t, j) for t in 'AB' for j in range(16)] + [('C', i) for i in range(4)]) and items[-1] == (('C', 3) if o.get('cpx') else ('B', 15))
        else:
            items += [('A', j) for j in range(F, 16)] + [('B', j) for j in range(F, 16)] + [('C', 2), ('C', 3)]
        self.items = items
        off = self.off = 2
        self.nblk = len(items) - off - (1 if end2 else 2)
        nblk = self.nblk
        plan = o.get('plan') or self.default_plan(items)
        iA15 = items.index(('A', 15))
        stream = []
        xsched = {}
        self.prebar = {}; self.forcebar = set(); self.bg_of = {}
        qb = o.get('qcs', 3)
        r0, w0, x0 = self.scale_chunk(lQc, 0, ('QC',), d=lD0, t=lT)
        r1, w1, x1 = self.scale_chunk(lQc, 1024, ('QC',), d=lD1, t=lT)
        r0[0].m['rdq'] = ('QC', 0); r1[0].m['rdq'] = ('QC', 1); r1[0].m['space'] = 3; r1[0].m['solo'] = True
        x1[0].m['lg'] = 'QCW'
        wv = self.waitvm([('QC', 0), ('QC', 1)]); wv.m['solo'] = True
        xsched.setdefault(qb, []).extend([wv] + r0 + r1 + w0 + x0 + w1 + x1)
        qf = self.qfrag('C', lCf)
        def qc_publish(pbk):
            self.prebar[pbk + off] = [self.waitlg('QCW')]; self.forcebar.add(pbk + off)
            for x in qf: x.m['afterbar'] = pbk + off
            xsched.setdefault(pbk, []).extend(qf)
            if o.get('verbose'): print('QC publish in block', pbk)
        qc_state = [o.get('qcp', 'auto')]
        if qc_state[0] != 'auto': qc_publish(qc_state[0])
        bA = self.bA = iA15 - off
        bAd = o.get('addrblk', 9)
        rcA, rcB = eRC, eRC + 2
        ea = self.epi_addr()
        xsched.setdefault(bAd, []).extend(ea)
        pre = self.epi_pre('A', rcA)
        pre[0].m['ming'] = 3
        xsched.setdefault(bA + 1, []).extend(pre)
        self.aux = []; self.auxsched = {}
        ms = o.get('ms') and end2
        cw, rd, sts = self.epi_tile('A', rcA)
        if ms:
            cw, rd, sts = self.epi_tile('A', rcA, land=aQA)
            hq = [i for i, x in enumerate(cw) if x.t.startswith('ds_write')][7] + 1
            pre[0].m['ming'] = 0; pre[3].m['minblk'] = (bA + 1, 6)
            sa = pre[:3] + cw[:hq] + rd[:4] + pre[3:] + cw[hq:] + rd[4:]
            depA = (cw[hq - 1], cw[-1])
            k = 0
            for x in sts:
                if x.m.get('st'):
                    x.m['after'] = (rd[k], o.get('rdlat', 5)); x.m['hold'] = o.get('stgap', 10); x.m['force'] = True; k += 1
            self.aux += [dict(name='SS', items=[], hold=0, prio=1), dict(name='CW', items=[], hold=0, prio=2), dict(name='SA', items=[], hold=0, prio=o.get('prioA', 3)),
                         dict(name='CR', items=[], hold=0, prio=o.get('prioC', 4))]
            self.auxsched['SA'] = {bA + 1: sa}
            self.auxsched['SS'] = {bA + 1: sts}
            pre = []; cw = []; rd = []; sts = []
            xsched[bA + 1] = [x for x in xsched.get(bA + 1, []) if not x.t.startswith(('v_cmp_gt', 'v_rcp', 'v_cndmask'))]
        swA = o.get('epiA', o.get('epi')) == 'swap'
        for x in sts + (cw if swA else []):
            if x.m.get('st'):
                x.m['solo'] = True
                if not swA or o.get('stspace_sw'): x.m['space'] = (o.get('stspace_sw') if swA else 0) or o.get('stspace', 3)
        st = cw + rd + sts
        if o.get('cpx') == 2:
            xsched[bA + 1] = [x for x in xsched.get(bA + 1, []) if not any(x is y for y in pre)]
            st = []
        xsched.setdefault(bA + 1, []).extend(st)
        front = {}
        if o.get('cpx') == 2:
            assert end2 and not ms and not self.vsum
            xsched.setdefault(bAd, []).extend(self.cpx_addr())
            xsched.setdefault(bAd, []).extend([X(f's_add_u32 s{sSO + k}, s{sW16k}, {4096 * (k + 1)}') for k in range(3)])
            xsched.setdefault(0, []).insert(0, X(f'v_lshlrev_b32 v{vL16}, 4, v{vLane}'))
            for i in range(4):
                bC = items.index(('C', i)) - off
                if bC < nblk:
                    assert bC + off not in self.prebar
                    self.prebar[bC + off] = [self.waitlg(f'PW{i}')]; self.forcebar.add(bC + off)
            bB = items.index(('B', 15)) - off
            preA = pre; preB = self.epi_pre('B', rcB); self.preB = preB
            self.aux = [dict(name='SS', items=[], hold=0, prio=1), dict(name='SV', items=[], hold=0, prio=3)]
            self.auxsched = {'SS': {}, 'SV': {}}
            npk = o.get('bpkn', 0)
            for tile, rc, pr_, bT in (('A', rcA, preA, bA), ('B', rcB, preB, bB)):
                for x in pr_: x.m.pop('ming', None)
                pr_[0].m['minblk'] = (bT, o.get('bq0', 27)); pr_[3].m['minblk'] = (bT + 1, o.get('bq1' + tile, o.get('bq1', 3)))
                if o.get('epi2') == 'lds':
                    cw_, rd_, _ = self.epi_tile(tile, rc, pkfrom=(16 - 2 * npk if tile == 'B' else 99))
                    if tile in o.get('pkburst', ''):
                        cw_, rd_, _ = self.epi_tile(tile, rc, pkfrom=0)
                        nb_ = o.get('pkbn', 16)
                        c2_ = []
                        for q in range(2):
                            h_ = cw_[40 * q: 40 * q + 40]
                            pk_ = [x for x in h_ if x.t.startswith('v_pk_mul')]
                            rest = [x for x in h_ if not x.t.startswith('v_pk_mul')]
                            for b0 in range(0, 16, nb_):
                                for i in range(b0, b0 + nb_):
                                    if i > b0: pk_[i].m['force'] = True
                                    c2_.append(pk_[i])
                                c2_ += rest[3 * (b0 // 2): 3 * ((b0 + nb_) // 2)]
                        cw_ = c2_
                    hq = [i for i, x in enumerate(cw_) if x.t.startswith('ds_write')][7] + 1
                    stf = o.get('stflag', 'nt'); stf = f' {stf}' if stf else ''
                    si = []
                    for i in range(8):
                        k = (2 if tile == 'B' else 0) + (i >> 2)
                        so = f's{sW16k}' if k == 0 else f's{sSO + k - 1}'
                        off_ = f' offset:{(i & 3) * 1024}' if i & 3 else ''
                        si.append(X(f'buffer_store_dwordx4 {vr(OO[tile] + 4 * i, 4)}, v{eSO}, {sr(sO,4)}, {so} offen{off_}{stf}', st=True,
                                    after=(rd_[i], o.get('rdlat', 5)), force=True, hold=o.get('stgap' + tile, o.get('stgap', 8))))
                    for x in pr_:
                        if x.t.startswith('v_rcp'): x.m['slack'] = o.get('pslack', 4)
                    self.auxsched['SV'][bT] = pr_[:3] + cw_[:hq] + rd_[:4] + pr_[3:] + cw_[hq:] + rd_[4:]
                    self.auxsched['SS'][bT] = si
                    continue
                P8 = [(q, m) for q in range(2) for m in range(4)]
                pkl = [tile == 'B' and i >= 8 - npk for i in range(8)]
                if tile in o.get('pkburst', ''):
                    li = self.epi_stream3(tile, rc)
                    vi = [x for x in li if not x.m.get('st')]
                    si = [x for x in li if x.m.get('st')]
                    for x in vi + pr_:
                        if x.t.startswith(('v_permlane', 'v_rcp')): x.m['slack'] = o.get('pslack', 4)
                    for x in si:
                        x.m['force'] = True; x.m['hold'] = o.get('stgap' + tile, o.get('stgap', 8))
                    hq = len(vi) // 2
                    self.auxsched['SV'][bT] = pr_[:3] + vi[:hq] + pr_[3:] + vi[hq:]
                    self.auxsched['SS'][bT] = si
                    continue
                li = self.epi_stream2(tile, rc, P8, pkl)
                vi = [x for x in li if not x.m.get('st')]
                si = [x for x in li if x.m.get('st')]
                for x in vi + pr_:
                    if x.t.startswith(('v_permlane', 'v_rcp')): x.m['slack'] = o.get('pslack', 4)
                for x in si:
                    x.m['force'] = True; x.m['hold'] = o.get('stgap' + tile, o.get('stgap', 8))
                kq = o.get('bkq', 14)
                sv = pr_[:3] + vi[:kq] + pr_[3:] + vi[kq:]
                self.auxsched['SV'][bT] = sv
                self.auxsched['SS'][bT] = si
        elif o.get('cpx'):
            assert end2 and not ms and not self.vsum and o.get('epi') != 'swap'
            xsched.setdefault(bAd, []).extend(self.cpx_addr())
            xsched.setdefault(0, []).insert(0, X(f'v_lshlrev_b32 v{vL16}, 4, v{vLane}'))
            for i in range(4):
                bC = items.index(('C', i)) - off
                if bC < nblk:
                    assert bC + off not in self.prebar
                    self.prebar[bC + off] = [self.waitlg(f'PW{i}')]; self.forcebar.add(bC + off)
            bB = items.index(('B', 15)) - off
            preB = self.epi_pre('B', rcB)
            self.preB = preB
            preB[0].m['minblk'] = (bB, o.get('bq0', 27)); preB[3].m['minblk'] = (bB + 1, o.get('bq1', 3))
            kq = o.get('bkq', 14)
            if o.get('epiB') == 'swap':
                cwB = self.epi_stream('B', rcB, [(q, m) for q in range(2) for m in range(4)], pk=o.get('bpk', False))
                for x in cwB:
                    if x.m.get('st'):
                        x.m['solo'] = True
                        if o.get('bstspace'): x.m['space'] = o['bstspace']
                sB = preB[:3] + cwB[:kq] + preB[3:] + cwB[kq:]
            else:
                cwB, rdB, stsB = self.epi_tile('B', rcB)
                hq = [i for i, x in enumerate(cwB) if x.t.startswith('ds_write')][7] + 1
                c1 = cwB[hq:]; s0 = stsB[:5]
                wv_ = []; step = len(c1) // 5; k = 0
                for i, x in enumerate(c1):
                    wv_.append(x)
                    if i % step == step - 1 and i >= step and k < len(s0):
                        wv_.append(s0[k]); k += 1
                        if k == 1: wv_.append(s0[k]); k += 1
                wv_ += s0[k:]
                for x in stsB:
                    if x.m.get('st') and o.get('bstsolo', True): x.m['solo'] = True
                sB = preB[:3] + cwB[:kq] + preB[3:] + cwB[kq:hq] + rdB[:4] + wv_ + rdB[4:] + stsB[5:]
            xsched.setdefault(bB, []).extend(sB)
        elif end2:
            bC = items.index(('C', 3)) - off
            xsched.setdefault(bAd, []).extend(self.comb_addr())
            cwr = self.comb_write()
            if ms:
                bK = items.index(('B', F)) - off - 2
                assert F == 12
                lb = max(bC, bK + 1)
                self.forcebar.add(lb + off)
                lw, ow = cwr[:2], cwr[2:]
                for x in ow: x.m['hold'] = o.get('cwgap', 3); x.m['force'] = True; x.m.pop('lg', None)
                if lb > bC:
                    for x in lw: x.m['afterbar'] = lb + off
                nfirst = o.get('lwpos', 4)
                cwr = ow[:nfirst] + lw + ow[nfirst:]
                cwr[-1].m['lg'] = 'CPW'
                self.auxsched['CW'] = {bC + 1: cwr}
                bP = bC + o.get('cpub', 3)
                self.prebar[bP + off] = [self.waitlg('CPW')]; self.forcebar.add(bP + off)
                cr, cst = self.comb_read2(*depA)
                for x in cr: x.m['afterbar'] = bP + off
                for x in cst: x.m['hold'] = o.get('stgap', 10); x.m['force'] = True
                self.auxsched['CR'] = {bP: cr}
                self.auxsched['SS'].setdefault(bP, []).extend(cst)
            else:
                self.forcebar.add(bC + off)
                front[bC + 1] = cwr
                self.prebar[bC + 2 + off] = [self.waitlg('CPW')]; self.forcebar.add(bC + 2 + off)
                cr = self.comb_read()
                for x in cr: x.m['afterbar'] = bC + 2 + off
                xsched.setdefault(bC + 2, []).extend(cr)
        for n in range(nblk):
            cur, nxt = items[n + off], items[n + off + 1]
            nn = items[n + off + 2] if n + off + 2 < len(items) else None
            prev = items[n + off - 1]
            ext = front.get(n, []) + stream + xsched.get(n, [])
            a.c(f'block {n}: Q{nxt[0]}{nxt[1]} P{cur[0]}{cur[1]}')
            if o.get('stamps') and (o.get('smap') or not o.get('lite') or n in o.get('sblk', ())): self.stamp(5 + n if n < 27 else 40 + n - 27)
            first_pv = cur == ('C', 0)
            if nxt == ('C', 0): assert not any(x in qf for x in ext), 'QC fragments not loaded before the block with QK(C0)'
            out, stream = self.block(n + off, cur, nxt, nn, prev if n else 'FIRST', plan.get(n, []), ext, first_pv)
            self.emit(out)
            if qc_state[0] == 'auto' and any(x is x1[0] for x in out):
                qc_state[0] = n + 1; qc_publish(n + 1)
            if nxt == ('C', 0): assert qc_state[0] != 'auto' and qc_state[0] < n and not any(x in qf for x in stream), 'QC fragments not loaded before QK(C0)'
        if self.aux:
            pools = [stream] + [z['items'] for z in sorted(self.aux, key=lambda z: -z['prio'])]
            merged = []
            while any(pools):
                prog = False
                for p in pools:
                    while p:
                        af = p[0].m.get('after')
                        if af is not None and af[0].m.get('gg') is None: break
                        it = p.pop(0); it.m['gg'] = 1 << 30; merged.append(it); prog = True
                assert prog
            stream = merged
            if o.get('verbose'): print('leftover', len(stream), [x.t for x in stream][:40])
        if o.get('cpx') == 2 and o.get('t3v') == 2: self.tail3b(nblk + off, stream)
        elif o.get('cpx'): self.tail3(nblk + off, stream)
        elif end2: self.tail2(nblk + off, stream, rcB)
        else: self.tail(nblk + off, stream, rcB)
        a.label('L_end')
        a('s_endpgm')
        self.main_end = len(self.L)
        self.fallback()

    def default_plan(self, items):
        o = self.opt; off = self.off
        when = dict(o.get('dma_blocks'))
        nblk = self.nblk
        ld = []
        for n in range(nblk):
            prev, cur, nxt = items[n + off - 1], items[n + off], items[n + off + 1]
            nn = items[n + off + 2] if n + off + 2 < len(items) else nxt
            s = self.src_of
            c = 0
            if s(prev) != s(cur): c += 32
            if n == 0: c += 32
            if s(nn) != s(nxt): c += 40
            if s(nxt) != s(cur): c += 32
            ld.append(c)
        self.blkload = ld
        plan = {}
        g = o.get('dma_gap', 1)
        win = o.get('dma_win', ((-1, 0), (0, 1)))
        order = []
        for key, b in when.items():
            if isinstance(key, tuple):
                ld[b] += 20; order.append((b, key[0], key[1])); continue
            j = key
            for i, kind in enumerate('KV'):
                if (kind, j) in self.issued: continue
                cand = [b + d for d in win[i] if 0 <= b + d < nblk]
                bb = min(cand, key=lambda x: (ld[x], abs(x - b)))
                ld[bb] += 20
                order.append((bb, kind, j))
        for bb, kind, j in order: plan.setdefault(bb, []).append((g, kind, j))
        if o.get('verbose'): print('plan', {b: [(k, j) for _, k, j in v] for b, v in sorted(plan.items())}); print('load', ld)
        return plan

    def tail(self, bi, left, rcB):
        a = self; o = self.opt
        c2, c3 = SBUF[bi & 1], SBUF[(bi + 1) & 1]
        st = o.get('stflag', 'nt'); st = f' {st}' if st else ''
        self.stamp(32); self.stamp(38, real=True)
        for s in left: a(s)
        vhi2 = [self.vread(('c', 2), dt, e) for dt in range(4, 8) for e in range(2)]
        cw, rd, sts = self.epi_tile('B', rcB)
        preB = self.epi_pre('B', rcB)
        q3 = [self.mfma_qk('C', c3, t, NEG['C']) for t in range(16)]
        for s in vhi2: a(s)
        NP = self.NP
        sm2 = sum([self.cvts('C', c2, 0, k) for k in range(4)], []) + self.smq(c2, 1, tile='C')
        n2 = 12 if self.vsum else 8
        self.mix(q3[:4], sm2[:n2])
        self.mix(q3[4:], preB + sm2[n2:] + cw + rd)
        self.stamp(53)
        a(f'v_add_u32 v{vVc0}, s{sCo+3}, v{vV0[0]}')
        a(f'v_add_u32 v{vVc1}, s{sCo+3}, v{vV1[0]}')
        k = [0]
        def store():
            while k[0] < len(sts):
                x = sts[k[0]]; a(x); k[0] += 1
                if x.m.get('st'): break
        self.stamp(54)
        pv2 = [self.mfma_pv('C', c2, kk) for kk in range(2 * NP)]
        sm3 = self.smq(c3, 0, tile='C') + self.smq(c3, 1, tile='C')
        pv3 = [self.mfma_pv('C', c3, kk) for kk in range(2 * NP)]
        n = len(sm3); kk = 0
        for i, m in enumerate(pv2):
            a(m)
            if NP <= i < NP + 8:
                a(self.vread(('c', 3), i - NP, 0)); a(self.vread(('c', 3), i - NP, 1))
            upto = (n * (i + 1) + 2 * NP - 1) // (2 * NP)
            while kk < upto:
                a(sm3[kk]); kk += 1
            if i in (1, 4, 7, 10, 13): store()
        self.stamp(55)
        lrC = (self.lreduce('C', 0, eT + 10) + self.lreduce('C', 1, eT + 11)) if self.vsum else []
        for m in pv3[:NP]: a(m)
        store(); store(); store()
        assert k[0] == len(sts)
        self.mix(pv3[NP:], lrC)
        t = eT
        a(f'v_and_b32 v{t+2}, 15, v{vLane}')
        a(f'v_lshrrev_b32 v{t+3}, 4, v{vLane}')
        a(f's_mul_i32 s{sT1}, s{sW}, {PART}')
        a(f's_add_u32 s{sT1}, s{sT1}, {PB}')
        a(f'v_mul_u32_u24 v{t+4}, 528, v{t+2}')
        a(f'v_lshl_add_u32 v{t+4}, v{t+3}, 4, v{t+4}')
        a(f'v_add_u32 v{t+4}, s{sT1}, v{t+4}')
        a(f's_lshl_b32 s{sT1}, s{sW}, 7')
        a(f'v_lshlrev_b32 v{t+6}, 2, v{t+2}')
        a(f'v_add_u32 v{t+6}, s{sT1}, v{t+6}')
        a(f'v_and_b32 v{t+5}, 31, v{vLane}')
        a(f'v_lshlrev_b32 v{t+5}, 2, v{t+5}')
        lC = LL['C']
        a(f'v_add_f32 v{lC}, v{lC}, v{vBad}')
        a(f'v_add_f32 v{lC+4}, v{lC+4}, v{vBad}')
        a('s_waitcnt lgkmcnt(0)')
        self.stamp(56)
        a(self.barrier())
        self.stamp(57)
        a(f'ds_write_b32 v{t+6}, v{lC}')
        a(f'ds_write_b32 v{t+6}, v{lC+4} offset:64')
        for q in range(2):
            for dt in range(8):
                off = q * 8448 + dt * 64
                a(f'ds_write_b128 v{t+4}, {ar(aOC+32*q+4*dt,4)}' + (f' offset:{off}' if off else ''))
        a(f's_lshl_b32 s{sT1}, s{sW}, 3')
        a(f'v_lshrrev_b32 v{t+7}, 4, v{vLane}')
        a(f'v_add_u32 v{t+7}, s{sT1}, v{t+7}')
        a(f'v_lshlrev_b32 v{t+8}, 2, v{t+7}')
        a(f'v_and_b32 v{t+9}, 15, v{vLane}')
        a(f'v_mul_u32_u24 v{t+10}, 528, v{t+7}')
        a(f'v_lshl_add_u32 v{t+10}, v{t+9}, 5, v{t+10}')
        a(f'v_lshlrev_b32 v{t+11}, 4, v{vLane}')
        a('s_waitcnt lgkmcnt(0)')
        self.stamp(33)
        a(self.barrier())
        L0 = 128
        for p in range(4): a(f'ds_read_b32 v{L0+p}, v{t+5} offset:{p*128}')
        for i in range(2):
            for p in range(4): a(f'ds_read_b32 v{L0+4+4*i+p}, v{t+8} offset:{p*128 + i*16}')
        PR = 144
        for i in range(2):
            for p in range(4):
                for hh in range(2):
                    a(f'ds_read_b128 {vr(PR+((i*4+p)*2+hh)*4,4)}, v{t+10} offset:{PB + p*PART + i*4*528 + hh*16}')
        a(f'v_add_f32 v{L0}, v{L0}, v{L0+1}'); a(f'v_add_f32 v{L0+2}, v{L0+2}, v{L0+3}'); a(f'v_add_f32 v{L0}, v{L0}, v{L0+2}')
        a(f'v_subrev_u32 v{L0+1}, s{sLo}, v{L0}')
        a(f'v_cmp_le_u32 vcc, s{sRng}, v{L0+1}')
        a(f's_cmp_lg_u32 s{sPass}, 0')
        a('s_cbranch_scc1 L_FIN')
        a('s_nop 1')
        if not o.get('no_fb'): a('s_cbranch_vccnz L_FB')
        a.label('L_FIN')
        self.stamp(58)
        for i in range(2):
            b = L0 + 4 + 4 * i
            a(f'v_add_f32 v{b}, v{b}, v{b+1}'); a(f'v_add_f32 v{b+2}, v{b+2}, v{b+3}'); a(f'v_add_f32 v{b}, v{b}, v{b+2}')
            a(f'v_rcp_f32 v{b}, v{b}')
        for i in range(2):
            base = PR + i * 32
            for e in range(8): a(f'v_add_f32 v{base+e}, v{base+e}, v{base+8+e}')
            for e in range(8): a(f'v_add_f32 v{base+16+e}, v{base+16+e}, v{base+24+e}')
            for e in range(8): a(f'v_add_f32 v{base+e}, v{base+e}, v{base+16+e}')
            for e in range(8): a(f'v_mul_f32 v{base+e}, v{base+e}, v{L0+4+4*i}')
            for e in range(4): a(f'v_cvt_pk_bf16_f32 v{base+e}, v{base+2*e}, v{base+2*e+1}')
        self.stamp(59)
        a(f's_lshl_b32 s{sT2}, s{sW}, 11')
        a(f's_add_u32 s{sT2}, s{sT2}, {8*8192}')
        for i in range(2):
            off = f' offset:{i*1024}' if i else ''
            a(f'buffer_store_dwordx4 {vr(PR+i*32,4)}, v{t+11}, {sr(sO,4)}, s{sT2} offen{off}{st}', st=True)
        if o.get('stamps'):
            self.stamp(34)
            a('s_waitcnt vmcnt(0)')
            self.stamp(35); self.stamp(36, real=True)
            if o.get('smap'):
                a('s_nop 4'); a(f'v_readlane_b32 s52, v{vST}, 0'); a('s_nop 4')
                a(f'v_subrev_u32 v{vST}, s52, v{vST}')
                a('s_mov_b32 s56, s54'); a('s_and_b32 s57, s55, 0xffff'); a('s_mov_b32 s58, 64'); a('s_mov_b32 s59, 0x20000')
                a(f'v_lshlrev_b32 v{t}, 2, v{vLane}')
                a(f'buffer_atomic_add v{vST}, v{t}, s[56:59], 0 offen')
            else:
              a('s_mov_b32 s56, s54'); a('s_and_b32 s57, s55, 0xffff'); a(f's_mov_b32 s58, {256 if o.get("stamps") == "dbg" else 0x1000000}'); a('s_mov_b32 s59, 0x20000')
              a(f's_lshl_b32 s60, s2, 2'); a(f's_add_u32 s60, s60, s{sW}'); a('s_lshl_b32 s60, s60, 8')
              a(f'v_lshlrev_b32 v{t}, 2, v{vLane}')
              a(f'buffer_store_dword v{vST}, v{t}, s[56:59], s60 offen')

    def comb_addr(self):
        t = eT
        out = [X(f's_lshl_b32 s{sE2}, s{sW}, 14'), X(f's_cmp_ge_u32 s{sW}, 2'), X(f's_cselect_b32 s{sT1}, {131072 - 32768}, 0'),
               X(f's_add_u32 s{sE2}, s{sE2}, s{sT1}'),
               X(f'v_and_b32 v{t}, 15, v{vLane}'), X(f'v_lshrrev_b32 v{t+1}, 4, v{vLane}'),
               X(f'v_lshlrev_b32 v{cWe}, 9, v{t}'),
               X(f'v_lshlrev_b32 v{cLW}, 4, v{t}'),
               X(f'v_and_b32 v{t}, 7, v{t}'), X(f'v_xor_b32 v{t}, v{t}, v{t+1}'),
               X(f'v_lshl_add_u32 v{cWe}, v{t}, 4, v{cWe}'),
               X(f'v_add_u32 v{cWe}, s{sE2}, v{cWe}'),
               X(f'v_xor_b32 v{cWo}, 64, v{cWe}'),
               X(f's_lshl_b32 s{sT1}, s{sW}, 2'), X(f's_add_u32 s{sT1}, s{sT1}, {LPB}'),
               X(f'v_add_u32 v{cLW}, s{sT1}, v{cLW}'),
               X(f's_lshl_b32 s{sT1}, s{sW}, 12'),
               X(f'v_and_b32 v{t}, 15, v{vLane}'), X(f'v_lshlrev_b32 v{t}, 1, v{t}'), X(f'v_xor_b32 v{t}, v{t}, v{t+1}'),
               X(f'v_lshlrev_b32 v{cR}, 9, v{t+1}'), X(f'v_lshl_add_u32 v{cR}, v{t}, 4, v{cR}'),
               X(f'v_add_u32 v{cR}, s{sT1}, v{cR}'),
               X(f'v_xor_b32 v{cR+1}, 16, v{cR}'), X(f'v_xor_b32 v{cR+2}, 64, v{cR}'), X(f'v_xor_b32 v{cR+3}, 80, v{cR}'),
               X(f's_lshl_b32 s{sT1}, s{sW}, 7'), X(f's_add_u32 s{sT1}, s{sT1}, {LPB}'),
               X(f'v_lshlrev_b32 v{cLR}, 4, v{t+1}'), X(f'v_add_u32 v{cLR}, s{sT1}, v{cLR}'),
               X(f's_lshl_b32 s{sT1}, s{sW}, 2'), X(f's_add_u32 s{sT1}, s{sT1}, {FLG}'),
               X(f'v_add_u32 v{cFL}, s{sT1}, v{eSO}')]
        return out
    def comb_write(self):
        lC = LL['C']
        out = [X(f'ds_write_b32 v{cLW}, v{lC}', ovw=[('K', 12)]), X(f'ds_write_b32 v{cLW}, v{lC+4} offset:256', ovw=[('K', 12)])]
        for q in range(2):
            for dt in range(8):
                off = q * 8192 + (dt >> 1) * 128
                out.append(X(f'ds_write_b128 v{cWo if dt & 1 else cWe}, {ar(aOC+32*q+4*dt,4)}' + (f' offset:{off}' if off else ''),
                             ovw=[(k, j) for k in 'KV' for j in (8, 9, 10, 11)]))
        out[-1].m['lg'] = 'CPW'
        return out
    def comb_read(self):
        st = self.opt.get('stflag', 'nt'); st = f' {st}' if st else ''
        PR = OA
        L0 = LL['C']
        out = [X(f'ds_read_b128 {vr(L0+4*i,4)}, v{cLR}' + (f' offset:{64*i}' if i else '')) for i in range(2)]
        def rd(p):
            r = []
            for i in range(2):
                for hh in range(2):
                    off = (p & 1) * 16384 + i * 2048
                    r.append(X(f'ds_read_b128 {vr(PR+((i*4+p)*2+hh)*4,4)}, v{cR+2*i+hh}' + (f' offset:{off}' if off else '')))
            return r
        out += rd(0) + rd(1)
        out += [X(f'v_add_u32 v{cR+k}, {131072}, v{cR+k}') for k in range(4)]
        out += rd(2) + rd(3)
        for i in range(2):
            b = L0 + 4 * i
            out += [X(f'v_add_f32 v{b}, v{b}, v{b+1}'), X(f'v_add_f32 v{b+2}, v{b+2}, v{b+3}'), X(f'v_add_f32 v{b}, v{b}, v{b+2}'),
                    X(f'v_subrev_u32 v{b+1}, s{sLo}, v{b}'), X(f'v_cmp_le_u32 s[62:63], s{sRng}, v{b+1}', solo=True),
                    X(f'v_rcp_f32 v{b}, v{b}', solo=True), X(f'v_cndmask_b32 v{vBad}, v{vBad}, v{eINF}, s[62:63]', solo=True)]
        for i in range(2):
            base = PR + i * 32
            for e in range(8): out.append(X(f'v_add_f32 v{base+e}, v{base+e}, v{base+8+e}'))
            for e in range(8): out.append(X(f'v_add_f32 v{base+16+e}, v{base+16+e}, v{base+24+e}'))
            for e in range(8): out.append(X(f'v_add_f32 v{base+e}, v{base+e}, v{base+16+e}'))
            for e in range(8): out.append(X(f'v_mul_f32 v{base+e}, v{base+e}, v{L0+4*i}'))
            for e in range(4): out.append(X(f'v_cvt_pk_bf16_f32 v{base+e}, v{base+2*e}, v{base+2*e+1}'))
            if i == 0: out += [X(f's_lshl_b32 s{sT2}, s{sW}, 11'), X(f's_add_u32 s{sT2}, s{sT2}, {8*8192}')]
            off = f' offset:{i*1024}' if i else ''
            out.append(X(f'buffer_store_dwordx4 {vr(base,4)}, v{eSO}, {sr(sO,4)}, s{sT2} offen{off}{st}', st=True, solo=True))
        return out

    def comb_read2(self, dep0, dep1):
        o = self.opt
        st = o.get('stflag', 'nt'); st = f' {st}' if st else ''
        PR = OA; L0 = LL['C']; cH = NEG['C']; lat = o.get('rdlat', 5)
        out = [X(f'v_add_u32 v{cH+k}, {131072}, v{cR+k}') for k in range(4)]
        lr = [X(f'ds_read_b128 {vr(L0+4*i,4)}, v{cLR}' + (f' offset:{64*i}' if i else '')) for i in range(2)]
        out += lr
        stores = []
        def reads(i):
            r = []
            for p in range(4):
                for hh in range(2):
                    off = (p & 1) * 16384 + i * 2048
                    r.append(X(f'ds_read_b128 {vr(PR+((i*4+p)*2+hh)*4,4)}, v{(cH if p >= 2 else cR)+2*i+hh}' + (f' offset:{off}' if off else '')))
            return r
        def lsum(i):
            b = L0 + 4 * i
            return [X(f'v_add_f32 v{b}, v{b}, v{b+1}'), X(f'v_add_f32 v{b+2}, v{b+2}, v{b+3}'), X(f'v_add_f32 v{b}, v{b}, v{b+2}'),
                    X(f'v_subrev_u32 v{b+1}, s{sLo}, v{b}'), X(f'v_cmp_le_u32 s[62:63], s{sRng}, v{b+1}', solo=True),
                    X(f'v_rcp_f32 v{b}, v{b}', solo=True), X(f'v_cndmask_b32 v{vBad}, v{vBad}, v{eINF}, s[62:63]', solo=True)]
        def summ(i):
            base = PR + i * 32; r = []
            for e in range(8): r.append(X(f'v_add_f32 v{base+e}, v{base+e}, v{base+8+e}'))
            for e in range(8): r.append(X(f'v_add_f32 v{base+16+e}, v{base+16+e}, v{base+24+e}'))
            for e in range(8): r.append(X(f'v_add_f32 v{base+e}, v{base+e}, v{base+16+e}'))
            for e in range(8): r.append(X(f'v_mul_f32 v{base+e}, v{base+e}, v{L0+4*i}'))
            for e in range(4): r.append(X(f'v_cvt_pk_bf16_f32 v{base+e}, v{base+2*e}, v{base+2*e+1}'))
            off = f' offset:{i*1024}' if i else ''
            stores.append(X(f'buffer_store_dwordx4 {vr(base,4)}, v{eSO}, {sr(sO,4)}, s{sT2} offen{off}{st}', st=True, after=(r[-1], 1)))
            return r
        r0, r1 = reads(0), reads(1)
        r0[0].m['after'] = (dep0, 1); r1[0].m['after'] = (dep1, 1)
        l0, l1 = lsum(0), lsum(1); l0[0].m['after'] = (lr[1], lat)
        s0, s1 = summ(0), summ(1)
        s0[0].m['after'] = (r0[3], lat); s0[8].m['after'] = (r0[7], lat)
        s1[0].m['after'] = (r1[3], lat); s1[8].m['after'] = (r1[7], lat)
        sa = [X(f's_lshl_b32 s{sT2}, s{sW}, 11'), X(f's_add_u32 s{sT2}, s{sT2}, {8*8192}')]
        out += r0 + l0 + l1 + sa + s0[:o.get('c2split', 16)] + r1 + s0[o.get('c2split', 16):] + s1
        return out, stores

    def cpx_addr(self):
        t = eT
        return [X(f'v_and_b32 v{t}, 15, v{vLane}'),
                X(f'v_lshlrev_b32 v{cLR}, 4, v{t}'),
                X(f's_lshl_b32 s{sT1}, s{sW}, 2'),
                X(f'v_add_u32 v{cLW}, s{sT1}, v{cLR}'),
                X(f'v_add_u32 v{cFL}, s{sT1}, v{eSO}'),
                X(f'v_lshlrev_b32 v{cWe}, 8, v{t}'),
                X(f'v_bfe_u32 v{t}, v{vLane}, 4, 1'), X(f'v_lshl_add_u32 v{cWe}, v{t}, 5, v{cWe}'),
                X(f'v_lshrrev_b32 v{t}, 5, v{vLane}'), X(f'v_lshl_add_u32 v{cWe}, v{t}, 4, v{cWe}'),
                X(f's_lshl_b32 s{sE2}, s{sW}, 6'), X(f's_add_u32 s{sE2}, s{sE2}, {8 * 8192}')]
    def tail3(self, bi, left):
        a = self; o = self.opt
        st = o.get('stflag', 'nt'); st = f' {st}' if st else ''
        cb = SBUF[bi & 1]
        self.stamp(32); self.stamp(38, real=True)
        if o.get('verbose'): print('left', len(left), [x.t for x in left][:6])
        pv = [self.mfma_pv('C', cb, k) for k in range(18)]
        body = pv[:8] + pv[9:17]
        lC = LL['C']
        left = list(left)
        ks = [i for i, x in enumerate(left) if any(x is y for y in self.preB)]
        n0 = (ks[-1] + 1) if ks else 0
        a(pv[8]); a(pv[17])
        if o.get('cpx') != 2 and self.vwin(3, 1) != self.vcur:
            self.vcur = self.vwin(3, 1)
            for x in self.vwin_set(self.vcur): a(x)
        for x in self.paddr_r(3): a(x)
        for dt in range(4, 8):
            for e in range(2): a(self.vread(('c', 3), dt, e))
        n1 = max(n0, min(len(left), o.get('t3n1', 0)))
        for x in left[:n1]: a(x)
        left = left[n1:]
        ovw = [('K', 10)]
        a(X(f'ds_write_b32 v{cLW}, v{lC} offset:{LPX}', ovw=ovw))
        a(X(f'ds_write_b32 v{cLW}, v{lC+4} offset:{LPX + 256}', ovw=ovw))
        a(X(f'ds_write_b32 v{cFL}, v{vBad} offset:{FLX}', ovw=ovw, lg='LFW'))
        self.stamp(53)
        a(self.waitlg('LFW'))
        a(self.barrier())
        L0, F0 = NEG['A'], NEG['B']
        pr = [self.pread(3, t, q) for q in range(2) for t in range(4)]
        for x in pr[:4]: a(x)
        for q in range(2): a(f'ds_read_b128 {vr(L0 + 4*q, 4)}, v{cLR} offset:{LPX + 256*q}')
        a(f'ds_read_b128 {vr(F0, 4)}, v{eSO} offset:{FLX}')
        for x in pr[4:]: a(x)
        n2 = min(len(left), o.get('t3n2', 12))
        for x in left[:n2]: a(x)
        left = left[n2:]
        self.stamp(54)
        lc = []
        for q in range(2):
            b = L0 + 4 * q
            lc += [X(f'v_add_f32 v{b}, v{b}, v{b+1}'), X(f'v_add_f32 v{b+2}, v{b+2}, v{b+3}'), X(f'v_add_f32 v{b}, v{b}, v{b+2}'),
                   X(f'v_subrev_u32 v{b+1}, s{sLo}, v{b}'), X(f'v_cmp_le_u32 s[62:63], s{sRng}, v{b+1}'),
                   X(f'v_rcp_f32 v{b}, v{b}'), X(f'v_cndmask_b32 v{F0}, v{F0}, v{eINF}, s[62:63]')]
        lc += [X(f'v_or3_b32 v{F0}, v{F0}, v{F0+1}, v{F0+2}'), X(f'v_or_b32 v{F0}, v{F0}, v{F0+3}'),
               X(f'v_cmp_ne_u32 vcc, 0, v{F0}'),
               X(f's_cmp_eq_u32 s{sPass}, 0'), X('s_cselect_b64 s[62:63], vcc, 0'), X('s_cmp_lg_u64 s[62:63], 0')]
        if o.get('forcefb'): lc.append(X(f's_cmp_eq_u32 s{sPass}, 0'))
        if not o.get('no_fb'): lc.append(X('s_cbranch_scc1 L_FB'))
        def epi(q):
            r = 8 * q
            v = [X(f'v_accvgpr_read_b32 v{r+i}, a{aOC + 8*q + i}') for i in range(8)]
            v += [X(f'v_mul_f32 v{r+i}, v{r+i}, v{L0 + 4*q}') for i in range(8)]
            v += [X(f'v_cvt_pk_bf16_f32 v{r+i}, v{r+2*i}, v{r+2*i+1}') for i in range(4)]
            v += [X('s_nop 1'), X(f'v_permlane16_swap_b32 v{r}, v{r+2}'), X(f'v_permlane16_swap_b32 v{r+1}, v{r+3}')]
            if q: v.append(X(f's_add_u32 s{sE2}, s{sE2}, 4096'))
            v.append(X(f'buffer_store_dwordx4 {vr(r, 4)}, v{cWe}, {sr(sO,4)}, s{sE2} offen{st}', st=True))
            return v
        n3 = min(len(left), o.get('t3n3', 24))
        self.mix(body[:8], left[:n3]); left = left[n3:]
        self.stamp(55)
        n4 = min(len(left), o.get('t3n4', 10))
        self.mix(body[8:], lc + left[:n4]); left = left[n4:]
        for x in epi(0): a(x)
        for x in left: a(x)
        for x in epi(1): a(x)
        self.stamp(34)
        a.label('L_FIN')
        self.stamp_out()
    def tail3b(self, bi, left):
        a = self; o = self.opt
        st = o.get('stflag', 'nt'); st = f' {st}' if st else ''
        cb = SBUF[bi & 1]
        self.stamp(32); self.stamp(38, real=True)
        if o.get('verbose'): print('left', len(left), [x.t for x in left][:6])
        pv = [self.mfma_pv('C', cb, k) for k in range(18)]
        def vg(x):
            m = re.fullmatch(r'(\S+) a\[(\d+):(\d+)\], (a\[\d+:\d+\]), (a\[\d+:\d+\]), a\[(\d+):(\d+)\]', x.t)
            d = int(m.group(2)) - aOC
            return X(f'{m.group(1)} {vr(d, 4)}, {m.group(4)}, {m.group(5)}, {vr(d, 4)}')
        body = [vg(x) for x in pv[:8] + pv[9:17]]
        lC = LL['C']
        left = list(left)
        k = len(left)
        while k > 0 and left[k - 1].m.get('st'): k -= 1
        pre, sts = left[:k], left[k:]
        assert all(not any(x is y for y in self.preB) for x in sts)
        a(pv[8]); a(pv[17])
        for x in self.paddr_r(3): a(x)
        for dt in range(4, 8):
            for e in range(2): a(self.vread(('c', 3), dt, e))
        w1, w2 = o.get('t3w', (99, 99))
        pre3 = []
        if len(pre) > w1: pre, pre2 = pre[:w1], pre[w1:]; pre2, pre3 = pre2[:w2], pre2[w2:]
        else: pre2 = []
        for x in pre: a(x)
        mv = [X(f'v_accvgpr_read_b32 v{i}, a{aOC + i}') for i in range(16)]
        nm0 = o.get('t3m0', 0)
        for x in mv[:nm0]: a(x)
        ovw = [('K', 10)]
        a(X(f'ds_write_b32 v{cLW}, v{lC} offset:{LPX}', ovw=ovw))
        a(X(f'ds_write_b32 v{cLW}, v{lC+4} offset:{LPX + 256}', ovw=ovw))
        a(X(f'ds_write_b32 v{cFL}, v{vBad} offset:{FLX}', ovw=ovw, lg='LFW'))
        self.stamp(53)
        nm1 = o.get('t3m1', 8)
        for x in mv[nm0:nm1]: a(x)
        for x in pre2: a(x)
        ns = list(o.get('t3s', (0, 1, 1, 1, 1)))
        def take(n):
            nonlocal sts
            r, sts = sts[:n], sts[n:]
            return r
        for x in take(ns[0]): a(x)
        a(self.waitlg('LFW'))
        a(self.barrier())
        L0, F0 = NEG['A'], NEG['B']
        pr = [self.pread(3, t, q) for q in range(2) for t in range(4)]
        for x in pr[:4]: a(x)
        for q in range(2): a(f'ds_read_b128 {vr(L0 + 4*q, 4)}, v{cLR} offset:{LPX + 256*q}')
        for x in pr[4:]: a(x)
        a(f'ds_read_b128 {vr(F0, 4)}, v{eSO} offset:{FLX}')
        for x in mv[nm1:]: a(x)
        for x in pre3: a(x)
        for x in take(ns[1]): a(x)
        self.stamp(54)
        early = []; late = []
        for q in range(2):
            b = L0 + 4 * q
            early += [X(f'v_add_f32 v{b}, v{b}, v{b+1}'), X(f'v_add_f32 v{b+2}, v{b+2}, v{b+3}'), X(f'v_add_f32 v{b}, v{b}, v{b+2}'),
                      X(f'v_subrev_u32 v{b+1}, s{sLo}, v{b}'), X(f'v_rcp_f32 v{b}, v{b}')]
            late += [X(f'v_cmp_le_u32 s[62:63], s{sRng}, v{b+1}'), X('s_nop 1'), X(f'v_cndmask_b32 v{F0}, v{F0}, v{eINF}, s[62:63]')]
        late += [X(f'v_or3_b32 v{F0}, v{F0}, v{F0+1}, v{F0+2}'), X(f'v_or_b32 v{F0}, v{F0}, v{F0+3}'),
                 X(f'v_cmp_ne_u32 vcc, 0, v{F0}'),
                 X(f's_cmp_eq_u32 s{sPass}, 0'), X('s_cselect_b64 s[62:63], vcc, 0'), X('s_cmp_lg_u64 s[62:63], 0')]
        if o.get('forcefb'): late.append(X(f's_cmp_eq_u32 s{sPass}, 0'))
        if not o.get('no_fb'): late.append(X('s_cbranch_scc1 L_FB'))
        def epi(q, pk):
            r = 8 * q
            if pk: v = [self.pkmul(r + 2 * i, L0 + 4 * q) for i in range(4)]
            else: v = [X(f'v_mul_f32 v{r+i}, v{r+i}, v{L0 + 4*q}') for i in range(8)]
            v += [X(f'v_cvt_pk_bf16_f32 v{r+i}, v{r+2*i}, v{r+2*i+1}') for i in range(4)]
            v += [X('s_nop 1'), X(f'v_permlane16_swap_b32 v{r}, v{r+2}'), X(f'v_permlane16_swap_b32 v{r+1}, v{r+3}')]
            stc = o.get('stflagC'); stc = st if stc is None else (f' {stc}' if stc else '')
            v.append(X(f'buffer_store_dwordx4 {vr(r, 4)}, v{cWe}, {sr(sO,4)}, s{sE2} offen' + stc, st=True))
            return v
        e0 = o.get('t3e0', 2)
        f0 = [[] for _ in range(8)]
        for i, x in enumerate(early): f0[min(7, e0 + i * (8 - e0) // len(early))].append(x)
        for x in take(ns[2]): f0[o.get('t3sp2', 1)].insert(0, x)
        for m, f in zip(body[:8], f0):
            a(m)
            for x in f: a(x)
        self.stamp(55)
        ep0 = epi(0, False)
        g0 = o.get('t3g0', 1)
        f1 = [[] for _ in range(8)]
        for i, x in enumerate(ep0): f1[min(7, g0 + i * (8 - g0) // len(ep0))].append(x)
        for x in take(ns[3]): f1[0].insert(0, x)
        for m, f in zip(body[8:], f1):
            a(m)
            for x in f: a(x)
        a(f's_add_u32 s{sE2}, s{sE2}, 4096')
        for x in epi(1, True): a(x)
        for x in sts: a(x)
        for x in late: a(x)
        self.stamp(34)
        a.label('L_FIN')
        self.stamp_out()
    def tail2(self, bi, left, rcB):
        a = self; o = self.opt
        cb = SBUF[bi & 1]
        NP = self.NP
        self.stamp(32); self.stamp(38, real=True)
        if o.get('verbose'): print('left', len(left), [x.t for x in left][:6])
        pv = [self.mfma_pv('B', cb, k) for k in range(2 * NP)]
        if o.get('epi') == 'swap': return self.tail2s(bi, left, rcB, pv)
        pkf = o.get('t2cw', 14) // 7 if o.get('t2pk1') else 99
        cw, rd, sts = self.epi_tile('B', rcB, pkfrom=pkf)
        preB = self.epi_pre('B', rcB)
        h = [i for i, x in enumerate(cw) if x.t.startswith('ds_write')][7] + 1
        vhi = [self.vread(('p', 15), dt, e) for dt in range(4, 8) for e in range(2)]
        for x in vhi: a(x)
        for k in range(4): a(self.cvt(cb, 0, k))
        self.mix(pv[:NP], self.smq(cb, 1, tile='B'))
        nl = min(len(left), o.get('t2left', 24))
        self.mix(pv[NP:NP + 4], left[:nl])
        self.mix(pv[NP + 4:], preB[:3] + cw[:o.get('t2cw', 14)])
        self.stamp(53)
        for x in left[nl:]: a(x)
        for x in cw[o.get('t2cw', 14):h]: a(x)
        for x in rd[:4]: a(x)
        for x in preB[3:]: a(x)
        a(f'ds_write_b32 v{cFL}, v{vBad}')
        self.stamp(54)
        s0 = sts[:5]
        c1 = cw[h:]
        step = len(c1) // 5
        k = 0
        for i, x in enumerate(c1):
            a(x)
            if i % step == step - 1 and i >= step and k < len(s0):
                a(s0[k]); k += 1
                if k == 1: a(s0[k]); k += 1
        while k < len(s0): a(s0[k]); k += 1
        self.stamp(55)
        for x in rd[4:]: a(x)
        for x in sts[5:]: a(x)
        self.tail_end()
    def tail2s(self, bi, left, rcB, pv):
        a = self; o = self.opt
        cb = SBUF[bi & 1]; NP = self.NP
        preB = self.epi_pre('B', rcB)
        vhi = [self.vread(('p', 15), dt, e) for dt in range(4, 8) for e in range(2)]
        for x in vhi: a(x)
        for k in range(4): a(self.cvt(cb, 0, k))
        self.mix(pv[:NP], self.smq(cb, 1, tile='B'))
        nl = min(len(left), o.get('t2left', 24))
        self.mix(pv[NP:NP + 4], left[:nl])
        n0 = o.get('t2n0', 1)
        P = [(q, m) for q in range(2) for m in range(4)]
        self.mix(pv[NP + 4:], preB[:3] + (self.epi_stream('B', rcB, P[:n0]) if n0 else []))
        self.stamp(53)
        for x in left[nl:]: a(x)
        for x in preB[3:]: a(x)
        a(f'ds_write_b32 v{cFL}, v{vBad}')
        self.stamp(54)
        for x in self.epi_stream('B', rcB, P[n0:], pk=o.get('t2pk', True)): a(x)
        self.tail_end()
    def tail_end(self):
        a = self; o = self.opt
        self.stamp(34)
        a('s_waitcnt lgkmcnt(0)')
        a(self.barrier())
        F0 = SBUF[0]
        a(f'ds_read_b128 {vr(F0,4)}, v{eSO} offset:{FLG}')
        a(f's_cmp_lg_u32 s{sPass}, 0')
        a('s_cbranch_scc1 L_FIN')
        a(f'v_or3_b32 v{F0}, v{F0}, v{F0+1}, v{F0+2}')
        a(f'v_or_b32 v{F0}, v{F0}, v{F0+3}')
        a(f'v_cmp_ne_u32 vcc, 0, v{F0}')
        a('s_nop 4')
        if o.get('forcefb'): a('s_mov_b64 vcc, -1'); a('s_nop 4')
        if not o.get('no_fb'): a('s_cbranch_vccnz L_FB')
        a.label('L_FIN')
        self.stamp_out()
    def stamp_out(self):
        a = self; o = self.opt
        if o.get('stamps'):
            t = eT
            a('s_waitcnt vmcnt(0)')
            self.stamp(35); self.stamp(36, real=True)
            a('s_mov_b32 s56, s54'); a('s_and_b32 s57, s55, 0xffff'); a(f's_mov_b32 s58, {256 if o.get("stamps") == "dbg" else 0x1000000}'); a('s_mov_b32 s59, 0x20000')
            a(f's_lshl_b32 s60, s2, 2'); a(f's_add_u32 s60, s60, s{sW}'); a('s_lshl_b32 s60, s60, 8')
            a(f'v_lshlrev_b32 v{t}, 2, v{vLane}')
            a(f'buffer_store_dword v{vST}, v{t}, s[56:59], s60 offen')

    def fallback(self):
        a = self
        a.label('L_FB')
        self.lin = True
        a(f's_mov_b32 s{sPass}, 1')
        a(f's_mov_b32 s{sMJ}, 0')
        for t in 'ABC':
            for q in range(2): a(f'v_mov_b32 v{MM[t]+q}, 0xff800000')
        a('s_waitcnt vmcnt(0) lgkmcnt(0)')
        a.label('L_FB_LOAD')
        a('s_barrier')
        a(f's_mov_b32 m0, s{sW2k}')
        a(f's_lshl_b32 s{sT1}, s{sMJ}, 13')
        a(X(self.dma(vDKa, sK, f's{sT1}', 0, None).t)); a(X(self.dma(vDKb, sK, f's{sT1}', 1024, None).t))
        a('s_waitcnt vmcnt(0)')
        a('s_barrier')
        for t in range(8): a(X(self.kread(('p', 0), t).t))
        a('s_waitcnt lgkmcnt(0)')
        for t in 'ABC':
            for k in range(16): a(self.mfma_qk(t, SBUF[0], k, '0'))
            a('s_nop 7'); a('s_nop 7')
            for s in self.maxtree(t, SBUF[0]): a(s)
            a('s_nop 1')
        a(f's_add_u32 s{sMJ}, s{sMJ}, 1')
        a(f's_cmp_lt_u32 s{sMJ}, 16')
        a('s_cbranch_scc1 L_FB_LOAD')
        a('s_barrier')
        a('s_branch L_RESTART')

    def passes(self):
        o = self.opt
        main, rest = self.L[:self.main_end], self.L[self.main_end:]
        main = [x for x in main if x is not None]
        main = self.lgkm_pass(main)
        if o.get('hoist'): main = self.hoist_pass(main)
        main = self.vm_pass(main)
        main = self.nop_pass(main)
        self.proto_check(main)
        self.L = main + rest

    def lgkm_pass(self, L):
        safe = self.opt.get('safe_gap', 10)
        out = []; pend = []; done = 0; mf = 0
        for x in L:
            t = x.t
            if x.m.get('label') or x.m.get('comment') or t == 'WAITVM':
                out.append(x); continue
            if t == 'WAITLG':
                ks = [k for k, pp in enumerate(pend) if pp[2] == x.m['lgw']]
                assert len(ks) == 1, ('WAITLG', x.m)
                n = min(len(pend) - 1 - ks[0], 15)
                if len(pend) - n > done:
                    out.append(X(f's_waitcnt lgkmcnt({n})', auto=True))
                    done = len(pend) - n
                continue
            m = re.search(r'lgkmcnt\((\d+)\)', t)
            if t.startswith('s_waitcnt') and m:
                done = max(done, len(pend) - int(m.group(1)))
                out.append(x); continue
            ins = Ins(t)
            rd = set(ins.r); wr = set(ins.w)
            chk = rd if ins.is_ds else (rd | wr)
            need = -1
            for k in range(done, len(pend)):
                if pend[k][0] & chk: need = k
            if need >= 0:
                k2 = need
                while k2 + 1 < len(pend) and mf - pend[k2 + 1][1] >= safe: k2 += 1
                n = min(len(pend) - 1 - k2, 15)
                out.append(X(f's_waitcnt lgkmcnt({n})', auto=True))
                done = len(pend) - n
            out.append(x)
            if ins.is_ds: pend.append((set(ins.w), mf, x.m.get('lg')))
            if ins.is_mfma: mf += 1
        return out

    def hoist_pass(self, L):
        go = [i for i, x in enumerate(L) if x.t == 'L_GO:'][0]
        out = []
        for n, x in enumerate(L):
            m = re.fullmatch(r's_waitcnt lgkmcnt\((\d+)\)', x.t)
            if m and x.m.get('auto') and n > go:
                k = n + 1
                while L[k].m.get('comment') or L[k].m.get('label'): k += 1
                if L[k].t.startswith('v_mfma'):
                    cnt = int(m.group(1)); j = len(out); ok = True; crossed = 0
                    while j > 0 and not out[j - 1].t.startswith('v_mfma'):
                        y = out[j - 1]
                        if y.t.startswith('ds_'): cnt -= 1
                        if y.t.startswith(('s_memtime', 's_memrealtime', 's_load', 's_cbranch', 's_branch')) or y.t == 'L_FIN:' or re.search(r'lgkmcnt', y.t): ok = False; break
                        if not (y.m.get('comment') or y.m.get('label')): crossed += 1
                        j -= 1
                    if ok and j > 0 and cnt >= 0 and crossed:
                        out.insert(j, X(f's_waitcnt lgkmcnt({cnt})', auto=True)); continue
            out.append(x)
        return out

    def vm_pass(self, L):
        out = []; vm = []; done = 0
        for x in L:
            if x.t == 'WAITVM':
                idx = -1
                for tg in x.m['vm']:
                    ks = [k for k, g in enumerate(vm) if g == tg]
                    assert ks, ('WAITVM on unissued', tg)
                    idx = max(idx, ks[-1])
                if idx < done and not self.opt.get('keepvm', True): continue
                n = len(vm) - 1 - idx
                assert n <= 63
                out.append(X(f's_waitcnt vmcnt({n})', vmw=n))
                done = max(done, idx + 1)
                continue
            out.append(x)
            if x.t.startswith('buffer_'): vm.append(x.m.get('dma'))
        return out

    def nop_pass(self, L):
        from hazard import violations
        for _ in range(20):
            idx = [i for i, x in enumerate(L) if not (x.m.get('label') or x.m.get('comment'))]
            v = violations([L[i].t for i in idx])
            if not v: break
            last = -100
            todo = []
            for pos, short, why in v:
                if pos - last < 24 and todo: continue
                todo.append((pos, short, why)); last = pos
            for pos, short, why in reversed(todo):
                if self.opt.get('verbose'): print('NOP', short, why, L[idx[pos]].t)
                while short > 0:
                    k = min(short, 16)
                    L.insert(idx[pos], X(f's_nop {k - 1}', auto=True)); short -= k
        return L

    def proto_check(self, L):
        vm = []; vdone = 0
        lg = []; ldone = 0
        pub = set(); owner = {}; lastrd = {}; released = {}
        def region(tag):
            if tag[0] in ('K', 'V'): return [(tag[0], tag[1] % R)]
            return []
        def overl(tag):
            if tag[0] == 'K': b = (tag[1] % R) * 16384; return (b, b + 8192)
            if tag[0] == 'V': b = (tag[1] % R) * 16384 + 8192; return (b, b + 8192)
            if tag[0] in ('QA', 'QB'): return (QSTG, QSTG + 65536)
            if tag[0] == 'QC': return (QSTG + 65536, QSTG + 73728)
        live = {}
        errs = []
        lastsh = {}; relsh = {}; lastk = {}; relk = {}; pwi = {}; ppub = set()
        qscaled = set()
        for n, x in enumerate(L):
            t = x.t
            if x.m.get('label') or x.m.get('comment'): continue
            if t.startswith('s_waitcnt'):
                m = re.search(r'vmcnt\((\d+)\)', t)
                if m: vdone = max(vdone, len(vm) - int(m.group(1)))
                m = re.search(r'lgkmcnt\((\d+)\)', t)
                if m: ldone = max(ldone, len(lg) - int(m.group(1)))
                continue
            if t == 's_barrier':
                fams = set(g for g in vm if g is not None)
                for g in fams:
                    ks = [k for k, h in enumerate(vm) if h == g]
                    if ks[-1] < vdone: pub.add(g)
                for f, k in lastrd.items():
                    released[f] = (k < ldone)
                for dd, rr in ((lastsh, relsh), (lastk, relk)):
                    for f, k in dd.items(): rr[f] = (k < ldone)
                for f, k in pwi.items():
                    if k < ldone: ppub.add(f)
                continue
            if t.startswith('buffer_'):
                tg = x.m.get('dma')
                vm.append(tg)
                if tg is not None:
                    fam = tg if tg[0] in 'KV' else (tg[0],)
                    lo, hi = overl(fam)
                    for f2, (l2, h2) in list(live.items()):
                        if f2 != fam and l2 < hi and lo < h2 and not (f2[0][0] == 'Q' and fam[0][0] == 'Q'):
                            if f2 in lastrd and not released.get(f2, False): errs.append(f'DMA {tg} overwrites {f2} (not released) at {n}')
                            if f2 not in lastrd: errs.append(f'DMA {tg} overwrites never-read {f2} at {n}')
                            del live[f2]
                    live[fam] = (lo, hi)
                continue
            if t.startswith('ds_'):
                k = len(lg); lg.append(x)
                for tg in x.m.get('ovw', []):
                    if self.opt.get('cpx'):
                        dd, rr = (lastsh, relsh) if x.m.get('ownok') else (lastk, relk)
                        if tg not in live: errs.append(f'LDS write into dead {tg} at {n}: {t}')
                        if tg in dd and not rr.get(tg, False): errs.append(f'LDS write over {tg} (not released) at {n}: {t}')
                    elif tg in lastrd and not released.get(tg, False): errs.append(f'LDS write over {tg} (not released) at {n}: {t}')
                if 'pw' in x.m: pwi[x.m['pw']] = k
                if 'pr' in x.m and x.m['pr'] not in ppub: errs.append(f'read of unpublished {x.m["pr"]} at {n}: {t}')
                if 'rdq' in x.m:
                    ks = [i for i, h in enumerate(vm) if h == x.m['rdq']]
                    if not ks or ks[-1] >= vdone: errs.append(f'Q chunk {x.m["rdq"]} read before landed at {n}')
                for tg in x.m.get('rd', []):
                    if tg not in live: errs.append(f'read of dead/unloaded {tg} at {n}: {t}')
                    if tg[0] in 'KV':
                        if tg not in pub: errs.append(f'read of unpublished {tg} at {n}: {t}')
                    lastrd[tg] = k; released[tg] = False
                    if 'pr' not in x.m:
                        lastk[tg] = k; relk[tg] = False
                        if not x.m.get('own'): lastsh[tg] = k; relsh[tg] = False
        self.proto_errs = errs

    def addresses(self):
        import subprocess, os, tempfile
        sys.path.insert(0, 'cdna_kernels')
        import cdna_launch as cl
        txt = cl.with_harness_metadata(self.text(), NAME, 6, launch_lists=True)
        open('_g3.s', 'w').write(txt)
        r = subprocess.run(['clang', '-x', 'assembler', '-target', 'amdgcn-amd-amdhsa', '-mcpu=gfx950', '_g3.s', '-o', '_g3.co'], capture_output=True, text=True)
        assert r.returncode == 0, r.stderr[:2000]
        d = subprocess.run(['llvm-objdump', '-d', '--mcpu=gfx950', '_g3.co'], capture_output=True, text=True).stdout
        ad = []
        base = None; on = False
        for line in d.splitlines():
            if line.endswith(f'<{NAME}>:'):
                base = int(line.split()[0], 16); on = True; continue
            if on and re.match(r'^[0-9a-f]+ <', line) and not re.search(r'<L_|<TP', line): break
            m = re.search(r'// ([0-9A-F]+):', line)
            if on and m: ad.append(int(m.group(1), 16) - base)
        ins = [x for x in self.L if not (x.m.get('label') or x.m.get('comment'))]
        assert len(ad) >= len(ins), (len(ad), len(ins))
        return dict(zip(map(id, ins), ad))

    def touch_pass(self):
        o = self.opt['touch']
        G = o.get('G', 4096); nch = o.get('chains', 4); first = o.get('first', G); mode = o.get('mode', 'chain')
        rounds = o.get('rounds', 1); PG = o.get('pages', 0)
        sI, sJ, sR = 56, 58, 60
        ent = [i for i, x in enumerate(self.L) if x.m.get('touch_entry')][0]
        npts = o.get('n0', 64)
        for it in range(4):
            E = [X('s_mov_b64 exec, 0')]
            if mode == 'chain':
                for w in range(nch - 1):
                    E.append(X(f's_cmp_eq_u32 s{sW}, {w}')); E.append(X(f's_cbranch_scc1 TP{w}'))
                E.append(X(f's_branch TP{nch - 1}'))
                E.append(X('L_TRET:', label=True))
            else:
                E += [X(f's_lshr_b32 s{sI}, s2, 3'), X(f's_lshl_b32 s{sI}, s{sI}, 2'), X(f's_add_u32 s{sI}, s{sI}, s{sW}'),
                      X(f's_mul_i32 s{sI}, s{sI}, {o.get("mul", 1)}'),
                      X(f's_mov_b32 s{sR}, {rounds}')]
                E.append(X('L_TLOOP:', label=True))
                k = 1
                while k * 2 * npts <= 128 * o.get('mul', 1) + rounds * o.get('step', 37): k *= 2
                while k >= 1:
                    E += [X(f's_cmp_ge_u32 s{sI}, {k * npts}'), X(f's_cselect_b32 s{sJ}, {k * npts}, 0'), X(f's_sub_u32 s{sI}, s{sI}, s{sJ}')]
                    k //= 2
                E += [X(f's_getpc_b64 s[{sJ}:{sJ+1}]'),
                      X(f's_lshl_b32 s{sI+1}, s{sI}, 2'),
                      X(f's_add_u32 s{sJ}, s{sJ}, s{sI+1}'), X(f's_addc_u32 s{sJ+1}, s{sJ+1}, 0'),
                      X(f's_add_u32 s{sJ}, s{sJ}, 24'), X(f's_addc_u32 s{sJ+1}, s{sJ+1}, 0'),
                      X(f's_setpc_b64 s[{sJ}:{sJ+1}]')]
                E += [X(f's_branch TP{k}') for k in range(npts)]
                E.append(X('L_TRET:', label=True))
                E += [X(f's_add_u32 s{sI}, s{sI}, {o.get("step", 37)}'), X(f's_sub_u32 s{sR}, s{sR}, 1'), X(f's_cmp_lg_u32 s{sR}, 0'), X('s_cbranch_scc1 L_TLOOP')]
            E.append(X('s_mov_b64 exec, -1'))
            L = self.L[:ent] + E + self.L[ent + 1:]
            save = self.L
            nlab = max(npts, nch)
            self.L = L + [X(f'TP{w}:', label=True) for w in range(nlab)]
            ad = self.addresses()
            self.L = save
            end = [i for i, x in enumerate(L) if x.t == 'L_end:'][0]
            tret = [i for i, x in enumerate(L) if x.t == 'L_TRET:'][0]
            out = []; shift = 0; nxt = first; k = 0; pts = []
            for i, x in enumerate(L):
                if tret < i < end and id(x) in ad and ad[id(x)] + shift >= nxt:
                    ismf = x.t.startswith('v_mfma')
                    late = ad[id(x)] + shift >= nxt + o.get('late', 64)
                    if ismf or late:
                        out.append(X(f'TP{k}:', label=True))
                        br = X('TPBR', tp=k); out.append(br); pts.append(br)
                        shift += 4; k += 1
                        while nxt <= ad[id(x)] + shift: nxt += G
                out.append(x)
            n = len(pts)
            if mode == 'chain' or n == npts: break
            npts = n
        for br in pts:
            kk = br.m['tp'] + nch
            br.t = f's_cbranch_execz TP{kk}' if (mode == 'chain' and kk < n) else 's_cbranch_execz L_TRET'
        for w in range(n, nch if mode == 'chain' else 0):
            idx = [i for i, x in enumerate(out) if x.t == 'L_TRET:'][0]
            out.insert(idx, X(f'TP{w}:', label=True))
        self.L = out
        print('touch points:', n)

    def text(self):
        hdr = f"""; GQA softmax attention forward, gfx950. Generated by gen/gen6.py (hand-written generator).
; @launch grid=(256,1,1) block=(256,1,1) lds=163840
.amdgcn_target "amdgcn-amd-amdhsa--gfx950"
.text
.p2align 12
.globl {NAME}
.p2align 8
.type {NAME},@function
{NAME}:
"""
        ftr = f"""
.section .rodata,"a"
.p2align 6
.amdhsa_kernel {NAME}
  .amdhsa_next_free_vgpr 512
  .amdhsa_next_free_sgpr {84 if self.opt.get('krot') else 80}
  .amdhsa_accum_offset 256
  .amdhsa_group_segment_fixed_size 0
  .amdhsa_kernarg_size 48
  .amdhsa_user_sgpr_count 2
  .amdhsa_user_sgpr_kernarg_segment_ptr 1
  .amdhsa_system_sgpr_workgroup_id_x 1
.end_amdhsa_kernel
"""
        body = []
        for x in self.L:
            if x.m.get('label') or x.m.get('raw'): body.append(x.t)
            else: body.append('  ' + x.t)
        return hdr + '\n'.join(body) + ftr


eSR, eSO, eINF = T, T + 2, T + 3
eRC = T + 4
eT = T + 8
eWA = MM['A']
cWe, cWo, cLW, cLR, cFL, cR = eT + 2, eT + 3, eT + 4, eT + 5, eT + 6, eT + 8
LPB, FLG = 2 * 16384, 3 * 16384
eWB = cR
eSRX = [eSR, eSR + 1, cWo, eT + 7]
LPX, FLX = 4096, 4096 + 1024
lD0, lD1, lT, lQc, lMr, lMd, lCf = T + 1, T + 5, T + 9, T + 17, T + 18, T + 19, T + 21


def make(path, **opt):
    g = Gen(opt)
    g.build()
    g.L = [x for x in g.L if x is not None]
    g.passes()
    if g.proto_errs:
        import os
        if os.path.exists(path): os.remove(path)
        print('PROTO FAIL', path, g.proto_errs[0]); return None
    abl = opt.get('abl', ())
    if abl:
        def keep(x):
            t = x.t
            if 'sum' in abl and t.startswith('v_mfma') and f', {ar(aONE,4)},' in t: return False
            if 'exp' in abl and t.startswith('v_exp'): return False
            if 'exph' in abl and t.startswith('v_exp') and int(t.split('v')[-1]) & 1: return False
            if 'cvt' in abl and t.startswith('v_cvt') : return False
            if 'kr' in abl and t.startswith('ds_read_b128 a['): return False
            if 'vr' in abl and t.startswith('ds_read_b64_tr'): return False
            if 'crd' in abl and len(x.m.get('rd', [])) == 4 and t.startswith('ds_read'): return False
            if 'qk' in abl and t.startswith('v_mfma') and int(t.split(', a[')[1].split(':')[0]) in range(aKF, aKF + 32): return False
            if 'pv' in abl and t.startswith('v_mfma') and int(t.split(', a[')[1].split(':')[0]) in range(aVF, aVF + 32): return False
            if 'dma' in abl and t.startswith('buffer_load'): return False
            if 'st' in abl and t.startswith('buffer_store_dwordx4'): return False
            if 'stA' in abl and t.startswith('buffer_store_dwordx4') and int(t.split('v[')[1].split(':')[0]) < 32 and 's48' in t: return False
            if 'stB' in abl and t.startswith('buffer_store_dwordx4') and 64 <= int(t.split('v[')[1].split(':')[0]) < 128: return False
            if 'w128' in abl and t.startswith('ds_write_b128'): return False
            if 'w64' in abl and t.startswith('ds_write_b64'): return False
            if 'r128v' in abl and t.startswith('ds_read_b128 v'): return False
            if 'mul' in abl and t.startswith(('v_mul_f32', 'v_add_f32')): return False
            if 'swp' in abl and t.startswith('v_permlane16_swap'): return False
            if 'cvte' in abl and t.startswith('v_cvt') and int(t.split()[1][1:].rstrip(',')) < 128: return False
            return True
        i0 = [i for i, x in enumerate(g.L) if x.t == 'L_GO:'][0]
        i1 = [i for i, x in enumerate(g.L) if x.t.startswith('; block 27')][0]
        if opt.get('ablend'):
            i0 = i1; i1 = [i for i, x in enumerate(g.L) if x.t == 'L_FIN:'][0]
        g.L = g.L[:i0] + [x for x in g.L[i0:i1] if keep(x)] + g.L[i1:]
        g.nohaz = True
    if opt.get('touch'): g.touch_pass()
    errs = check([x.t for x in g.L if not x.m.get('raw')], 'linear')
    for e in (errs[:2] if abl else errs): print('HAZARD', e)
    open(path, 'w').write(g.text())
    return g

if __name__ == '__main__':
    make('g5.s')
```

```python
import sys; sys.path.insert(0,'gen')
import gen6
C = 'cdna_kernels/'; B = 'bench/'
T1 = dict(G=1024, mode='table', first=2048)
Q1 = {('QC',0):0, 3:0, 4:1, 5:2, 6:4, 7:6, 8:8, 9:10, 10:12, 11:14, 12:16, 13:18, 14:19, 15:20}
PT1 = [('K', 1), ('V', 1), ('K', 2), ('V', 2), ('K', 3)]
PT2 = [('K', 1), ('V', 1), ('K', 2), ('V', 2), ('K', 3), ('V', 3), ('K', 4)]
Q2 = {('QC',0):0, ('V',4):0, 5:1, 6:3, 7:5, 8:7, 9:9, 10:12, 11:14, 12:16, 13:18, 14:19, 15:20}
Q3 = {('QC',0):1, ('V',4):0, 5:2, 6:4, 7:6, 8:8, 9:10, 10:12, 11:14, 12:16, 13:18, 14:19, 15:20}
I2 = (4, 4, 4, 2, 4, 4, 2)
Q4 = {('QC',0):1, ('V',4):1, 5:3, 6:5, 7:7, 8:9, 9:11, 10:13, 11:15, 12:17, 13:19, 14:20, 15:21}
Q5 = {('QC',0):2, ('V',4):0, 5:2, 6:4, 7:6, 8:8, 9:10, 10:12, 11:14, 12:16, 13:18, 14:19, 15:20}
Q6 = {('QC',0):1, ('V',4):0, 5:3, 6:5, 7:7, 8:9, 9:11, 10:13, 11:15, 12:17, 13:18, 14:19, 15:20}
Q7 = {('QC',0):1, ('K',4):0, ('V',4):2, 5:3, 6:5, 7:7, 8:9, 9:11, 10:13, 11:15, 12:17, 13:18, 14:19, 15:20}
Q8 = {('QC',0):2, ('V',3):0, ('K',4):1, ('V',4):3, 5:4, 6:6, 7:8, 8:10, 9:12, 10:14, 11:16, 12:17, 13:19, 14:20, 15:21}
PT3 = [('K', 1), ('V', 1), ('K', 2), ('V', 2), ('K', 3), ('V', 3)]
def vb(name, **o):
    b = dict(D); b.update(o)
    print(name, end=': '); return gen6.make(B + name + '.s', **b)
D = dict(F=12, touch=T1, dma_blocks=Q3, lateblk=4, ptiles=PT2, iss=I2, xcap_qc=12)
def v(name, **o):
    b = dict(D); b.update(o)
    print(name, end=': '); return gen6.make(C + name + '.s', **b)
def st(name, **o):
    b = dict(D); b.update(stamps=True, allreal=True, lite=True, sblk=(4,8,12,16,20,24,28)); b.update(o)
    print(name, end=': '); return gen6.make(B + name + '.s', **b)
K = dict(keep=(48,49,50,51,52,3,61,62,63), xcc=True, sblk=(1,2,3,4,6,8))
if __name__ == '__main__':
    exec(sys.argv[1])
```
